```python
import torch

def _softmax(x, axis=-1):
    return torch.softmax(x, dim=axis)
def _gelu(x):
    return torch.nn.functional.gelu(x, approximate="tanh")
def _silu(x):
    return torch.nn.functional.silu(x)
def _sigmoid(x):
    return torch.sigmoid(x)
def _layernorm(x, axis=-1, eps=1e-5):
    m = x.mean(dim=axis, keepdim=True)
    v = x.var(dim=axis, keepdim=True, unbiased=False)
    return (x - m) / torch.sqrt(v + eps)
def _scatter_add(tgt, idx, src, axis=0):
    return tgt.clone().index_add_(axis, idx, src)
def _segment_sum(src, seg, n):
    out = torch.zeros((n,) + src.shape[1:], dtype=src.dtype)
    return out.index_add_(0, seg, src)
def _pad(x, pw):
    flat = tuple(v for pair in reversed(pw) for v in pair)
    return torch.nn.functional.pad(x, flat)

kernel_name = 'parallel_sum__ssm_conv_h3__dense_activation_silu__prompt'

def setup_inputs():

    _w = (lambda a: (lambda t: t.to(torch.bfloat16) if t.is_floating_point() else t)(torch.as_tensor(a)))
    def _A_setup():
        B, S, D = 1, 2048, 512
        ks = 4
        return {
            "q": _w((lambda *s: torch.randn(*s, dtype=torch.bfloat16) * 0.05)(B, S, D)),
            "k": _w((lambda *s: torch.randn(*s, dtype=torch.bfloat16) * 0.2)(B, S, D)),
            "v": _w((lambda *s: torch.randn(*s, dtype=torch.bfloat16) * 0.2)(B, S, D)),
            "shift_k": _w((lambda *s: torch.randn(*s, dtype=torch.bfloat16) * 0.2)(D, ks) * 0.5),
            "ssm_k": _w((lambda *s: torch.randn(*s, dtype=torch.bfloat16) * 0.8)(D, S) * (1.0 / S ** 0.5)),
            "ssm_D": _w((lambda *s: torch.randn(*s, dtype=torch.bfloat16) * 0.2)(D)),
        }
    _A_in = _A_setup()

    def _B_setup():
        B, S, D, F = 1, 2048, 512, 1792
        return {
            "x": _w((lambda *s: torch.randn(*s, dtype=torch.bfloat16) * 0.05)(B, S, D)),
            "w1": _w((lambda *s: torch.randn(*s, dtype=torch.bfloat16) * 0.8)(D, F) * (D ** -0.5)),
            "w2": _w((lambda *s: torch.randn(*s, dtype=torch.bfloat16) * 0.1)(F, D) * (F ** -0.5)),
        }
    _B_in = _B_setup()

    return {
        "A_q": _A_in["q"],
        "A_k": _A_in["k"],
        "A_v": _A_in["v"],
        "A_shift_k": _A_in["shift_k"],
        "A_ssm_k": _A_in["ssm_k"],
        "A_ssm_D": _A_in["ssm_D"],
        "B_x": _B_in["x"],
        "B_w1": _B_in["w1"],
        "B_w2": _B_in["w2"],
    }

def reference(A_q, A_k, A_v, A_shift_k, A_ssm_k, A_ssm_D, B_x, B_w1, B_w2):
    def _A_ref(q, k, v, shift_k, ssm_k, ssm_D):
        B, S, D = q.shape
        ks = shift_k.shape[-1]
        k_pad = _pad(k, ((0, 0), (ks - 1, 0), (0, 0)))
        k_shift = torch.zeros_like(k)
        for t in range(ks):
            k_shift = k_shift + k_pad[:, t:t + S, :] * shift_k[:, ks - 1 - t][None, None, :]
        kv = k_shift * v
        L = 2 * S
        kv_pad = _pad(kv, ((0, 0), (0, S), (0, 0)))
        kf_pad = _pad(ssm_k, ((0, 0), (0, S)))
        kv_f = (lambda x, axes=(-2,-1): torch.fft.rfft2(x.float(), dim=axes))(kv_pad[:, None, :, :], axes=(1, 2))
        kf_f = (lambda x, axes=(-2,-1): torch.fft.rfft2(x.float(), dim=axes))(kf_pad[:, None, :], axes=(1, 2))
        kf_f = (lambda x, *d: x.permute(*d))(kf_f, 1, 2, 0)
        y_f = kv_f * kf_f[None, :, :, :]
        y = (lambda x, s, axes=(-2,-1): torch.fft.irfft2(x, s=s, dim=axes).to(torch.bfloat16))(y_f, (1, L), axes=(1, 2))[:, 0, :S, :]
        y = y + kv * ssm_D[None, None, :]
        return q * y

    def _B_ref(x, w1, w2):
        h = torch.einsum("bsd,df->bsf", x, w1)
        h = _silu(h)
        out = torch.einsum("bsf,fd->bsd", h, w2)
        return out

    x = A_q
    xn = _layernorm(x, axis=-1)
    return x + _A_ref(xn, A_k, A_v, A_shift_k, A_ssm_k, A_ssm_D) + _B_ref(xn, B_w1, B_w2)
```

```python
import re

REG = re.compile(r'^(-|abs\()?([vas])(\d+)\)?$')
RNG = re.compile(r'^(-)?([vas])\[(\d+):(\d+)\]$')

def regs_of(tok):
    tok = tok.strip()
    m = RNG.match(tok)
    if m:
        return {(m.group(2), i) for i in range(int(m.group(3)), int(m.group(4)) + 1)}
    m = REG.match(tok)
    if m:
        return {(m.group(2), int(m.group(3)))}
    if tok == 'vcc': return {('s', 106), ('s', 107)}
    if tok == 'vcc_lo': return {('s', 106)}
    if tok == 'vcc_hi': return {('s', 107)}
    if tok == 'exec': return {('s', 126), ('s', 127)}
    if tok == 'm0': return {('s', 124)}
    return set()

TRANS = ('v_exp_f32', 'v_log_f32', 'v_rcp_f32', 'v_rsq_f32', 'v_sqrt_f32', 'v_sin_f32', 'v_cos_f32')

class I:
    __slots__ = ('text', 'mn', 'ops', 'w', 'r', 'cls', 'passes', 'srcC', 'srcAB', 'lds_dma', 'wide_store_data')
    def __init__(self, text):
        self.text = text
        t = text.split(';')[0].strip()
        parts = t.split(None, 1)
        self.mn = parts[0]
        rest = parts[1] if len(parts) > 1 else ''
        ops, cur, depth = [], '', 0
        for ch in rest:
            if ch == '[': depth += 1
            if ch == ']': depth -= 1
            if ch == ',' and depth == 0:
                ops.append(cur.strip()); cur = ''
            else:
                cur += ch
        if cur.strip(): ops.append(cur.strip())
        clean = []
        mods = ''
        for o in ops:
            p = o.split(None, 1)
            clean.append(p[0])
            if len(p) > 1: mods += ' ' + p[1]
        self.ops = clean
        self.w = set(); self.r = set(); self.passes = 0
        self.srcC = set(); self.srcAB = set(); self.lds_dma = False; self.wide_store_data = set()
        mn = self.mn
        R = regs_of
        if mn.startswith('v_mfma'):
            self.cls = 'mfma'
            self.passes = 8 if '32x32x16' in mn else 4
            self.w = R(clean[0]); self.srcAB = R(clean[1]) | R(clean[2]); self.srcC = R(clean[3])
            self.r = self.srcAB | self.srcC
        elif mn.startswith('v_cmp'):
            self.cls = 'valu'; self.w = R(clean[0]); self.r = set().union(*[R(o) for o in clean[1:]])
        elif mn.startswith('v_permlane') and 'swap' in mn:
            self.cls = 'valu'; self.w = R(clean[0]) | R(clean[1]); self.r = set(self.w)
        elif mn.startswith('v_'):
            self.cls = 'valu'
            self.w = R(clean[0]); self.r = set().union(*[R(o) for o in clean[1:]]) if len(clean) > 1 else set()
            if mn.startswith(('v_fmac', 'v_dot2c', 'v_pk_fmac')): self.r |= self.w
            if mn.startswith('v_cndmask') and len(clean) == 3: self.r |= R('vcc')
            if mn.startswith(('v_add_co', 'v_sub_co', 'v_addc_co', 'v_subb_co')):
                self.w |= R(clean[1])
            if 'dst_unused:UNUSED_PRESERVE' in text: self.r |= self.w
        elif mn.startswith('ds_'):
            self.cls = 'ds'
            if mn.startswith(('ds_read', 'ds_bpermute', 'ds_permute', 'ds_swizzle')):
                self.w = R(clean[0]); self.r = set().union(*[R(o) for o in clean[1:]])
            else:
                self.r = set().union(*[R(o) for o in clean])
        elif mn.startswith(('buffer_', 'global_')):
            self.cls = 'vmem'
            allr = [R(o) for o in clean]
            islds = (' lds' in (' ' + mods + ' ')) or mn.startswith('global_load_lds') or t.endswith(' lds')
            if mn in ('buffer_inv', 'buffer_wbl2'):
                pass
            elif 'load' in mn and not islds:
                self.w = allr[0]; self.r = set().union(*allr[1:])
            elif 'load' in mn and islds:
                self.lds_dma = True; self.r = set().union(*allr) | R('m0')
            elif 'atomic' in mn:
                self.r = set().union(*allr)
                if 'sc0' in mods:
                    self.w = allr[0] if mn.startswith(('buffer', 'global')) else set()
            else:
                self.r = set().union(*allr)
                if 'x4' in mn or 'x3' in mn:
                    self.wide_store_data = allr[1] if mn.startswith('global') else allr[0]
        elif mn.startswith('s_'):
            self.cls = 'salu'
            if mn.startswith(('s_cmp', 's_cbranch', 's_branch', 's_waitcnt', 's_barrier', 's_nop', 's_sleep', 's_endpgm', 's_setprio', 's_bitcmp')):
                self.r = set().union(*[R(o) for o in clean]) if clean else set()
            else:
                self.w = R(clean[0]) if clean else set()
                self.r = set().union(*[R(o) for o in clean[1:]]) if len(clean) > 1 else set()
                if 'saveexec' in mn: self.w |= R('exec'); self.r |= R('exec')
        else:
            raise ValueError('unknown instruction: ' + text)
    def states(self):
        if self.mn == 's_nop': return int(self.ops[0]) + 1
        return 1

def vset(s): return {x for x in s if x[0] in 'va'}
def sset(s): return {x for x in s if x[0] == 's'}

def need_states(p, c):
    n = 0
    pw_v = vset(p.w)
    if p.cls == 'valu':
        if c.cls == 'mfma' and pw_v & c.r: n = max(n, 2)
        if c.mn.startswith(('v_readlane', 'v_readfirstlane')) and pw_v & vset(c.r): n = max(n, 1)
        if (c.mn.startswith('v_permlane') or 'dpp' in c.text or 'row_' in c.text or 'quad_perm' in c.text) and c.cls == 'valu' and pw_v & c.r: n = max(n, 2)
        if p.mn.startswith(TRANS) and c.cls in ('valu', 'mfma') and pw_v & c.r and not c.mn.startswith(TRANS): n = max(n, 1)
        if p.mn.startswith(TRANS) and c.cls in ('valu',) and pw_v & c.r: n = max(n, 1)
        ps = sset(p.w)
        if ps:
            if c.cls == 'valu' and ps & c.r: n = max(n, 4 if c.mn.startswith(('v_readlane', 'v_writelane')) else 2)
            if c.cls == 'vmem' and ps & c.r: n = max(n, 5)
            if c.cls == 'salu' and ps & c.r: n = max(n, 1)
        if ('sdwa' in p.mn or 'dst_sel' in p.text) and c.cls == 'valu' and pw_v & (c.r | c.w): n = max(n, 1)
    if p.cls == 'mfma':
        four = p.passes == 4
        if c.cls == 'mfma':
            if p.w & c.srcAB: n = max(n, 8 if four else 12)
            if p.w & c.srcC:
                if not (p.w == c.srcC and p.passes == c.passes): n = max(n, 6 if four else 10)
            if (p.w & c.w) and not (p.w == c.w and p.passes == c.passes and c.srcC == c.w):
                n = max(n, 6 if four else 10)
        else:
            if p.w & (c.r | c.w): n = max(n, 8 if four else 12)
            if c.cls == 'valu' and (p.srcC & vset(c.w)): n = max(n, 3 if four else 7)
    if p.cls == 'vmem' and p.wide_store_data:
        if c.cls == 'valu' and p.wide_store_data & c.w: n = max(n, 2)
        elif p.wide_store_data & c.w and c.cls in ('mfma',): n = max(n, 2)
    if p.cls == 'salu' and ('s', 124) in p.w and c.lds_dma: n = max(n, 1)
    return n

class Asm:
    def __init__(self):
        self.items = []
        self.vm = []
        self.lg = []
        self.nops_inserted = 0
    def raw(self, s): self.items.append(s)
    def label(self, s): self.items.append(s + ':')
    def c(self, s): self.items.append('; ' + s)
    def __call__(self, text, vm=None, lg=None):
        ins = I(text)
        self.items.append(ins)
        if ins.cls == 'vmem': self.vm.append(vm)
        if ins.cls == 'ds': self.lg.append(lg)
        if ins.mn == 's_waitcnt':
            m = re.search(r'vmcnt\((\d+)\)', text)
            if m:
                k = int(m.group(1)); self.vm = self.vm[len(self.vm) - k:] if k < len(self.vm) else self.vm
                if k == 0: self.vm = []
            m = re.search(r'lgkmcnt\((\d+)\)', text)
            if m:
                k = int(m.group(1)); self.lg = self.lg[len(self.lg) - k:] if k < len(self.lg) else self.lg
                if k == 0: self.lg = []
        return ins
    def wait_vm(self, *tags):
        last = -1
        for j, t in enumerate(self.vm):
            if t in tags: last = j
        if last < 0: return
        n = len(self.vm) - 1 - last
        assert n <= 63, n
        self(f's_waitcnt vmcnt({n})')
    def wait_lg(self, *tags):
        last = -1
        for j, t in enumerate(self.lg):
            if t in tags: last = j
        if last < 0: return
        n = len(self.lg) - 1 - last
        n = min(n, 15)
        self(f's_waitcnt lgkmcnt({n})')
    def finalize(self, window=24):
        out = []
        hist = []
        for it in self.items:
            if isinstance(it, str):
                out.append(it); continue
            need = 0
            dist = 0
            for p in reversed(hist):
                n = need_states(p, it)
                if n > dist: need = max(need, n - dist)
                dist += p.states()
                if dist >= 20: break
            while need > 0:
                k = min(need, 16)
                nop = I(f's_nop {k-1}')
                out.append(nop); hist.append(nop); self.nops_inserted += 1
                need -= k
            out.append(it); hist.append(it)
            if len(hist) > 64: hist = hist[-40:]
        self.items = out
    def text(self):
        L = []
        for it in self.items:
            L.append(it if isinstance(it, str) else '    ' + it.text)
        return '\n'.join(L) + '\n'
    def check_backedge(self, label):
        items = self.items
        li = next(i for i, x in enumerate(items) if isinstance(x, str) and x == label + ':')
        bi = max(i for i, x in enumerate(items) if not isinstance(x, str) and x.mn.startswith('s_cbranch') and x.ops[0] == label)
        tail = [x for x in items[li:bi + 1] if not isinstance(x, str)]
        seq = tail[-30:] + tail[:30]
        base = len(tail[-30:])
        for j in range(base, len(seq)):
            dist = 0
            for p in reversed(seq[:j]):
                n = need_states(p, seq[j])
                assert n <= dist, f'back-edge hazard: {p.text} -> {seq[j].text} need {n} have {dist}'
                dist += p.states()
                if dist >= 20: break

class Regs:
    def __init__(self, nv=256, na=256, s_lo=0, s_hi=100):
        self.free = {'v': [True] * nv, 'a': [True] * na, 's': [True] * s_hi}
        self.names = {}
        self.hi = {'v': 0, 'a': 0, 's': 0}
    def alloc(self, kind, name, n=1, align=None, at=None):
        if align is None: align = 4 if n >= 4 else (2 if n >= 2 else 1)
        f = self.free[kind]
        rng = [at] if at is not None else range(0, len(f) - n + 1, align)
        for b in rng:
            if all(f[b:b + n]):
                for j in range(b, b + n): f[j] = False
                assert name not in self.names, name
                self.names[name] = (kind, b, n)
                self.hi[kind] = max(self.hi[kind], b + n)
                return b
        raise RuntimeError(f'out of {kind} regs for {name} ({n}); used: {sorted((k,b,n,nm) for nm,(k,b,n) in self.names.items())}')
    def release(self, *names):
        for name in names:
            kind, b, n = self.names.pop(name)
            for j in range(b, b + n): self.free[kind][j] = True

def rr(kind, b, n=1):
    return f'{kind}{b}' if n == 1 else f'{kind}[{b}:{b+n-1}]'
```

```python
import sys
from asmlib import Asm, Regs, rr

KNAME = "parallel_sum__ssm_conv_h3__dense_activation_silu__prompt_kernel"

WS_KVT  = 0x000000
WS_W2F  = 0x200000
WS_HF   = 0x400000
WS_STAT = 0xB00000
WS_Y2T  = 0xC00000
WS_SIZE = 0xE00000
TILE_B  = 56 * 4096

L_W1   = 0
L_BNC  = 114688
L_HC   = 122880
L_MISC = 156160
L_SHK  = L_MISC
L_COL  = L_MISC + 2048
LDS_BYTES = 160 * 1024

def cnt_off(kind, j):
    base = {'A': 0, 'H': 2, 'Y': 6}[kind]
    return ((j % 4) * 16 + base + j // 4) * 4

OOB = 0x7FFFFFF0

class K:
    def __init__(self, stage=99, stamps=False):
        self.a = Asm(); self.R = Regs(); self.stage = stage; self.stamps = stamps
        self.nstamp = 0

    S_PTR = 4
    SRD_Q, SRD_K, SRD_V, SRD_W1, SRD_W2, SRD_WS, SRD_SK, SRD_SH, SRD_OUT, SRD_SD = 28, 32, 36, 40, 44, 48, 52, 56, 60, 64
    S_W, S_X, S_I, S_MT, S_NT = 68, 69, 70, 71, 72
    S_DBG = 24
    T = 74
    S_STAMP = 96

    def srd(self, dst, ptr, nbytes, add=None):
        a = self.a
        if add is None:
            a(f's_mov_b32 s{dst}, s{ptr}'); a(f's_and_b32 s{dst+1}, s{ptr+1}, 0xffff')
        else:
            a(f's_add_u32 s{dst}, s{ptr}, s{add}'); a(f's_addc_u32 s{dst+1}, s{ptr+1}, 0'); a(f's_and_b32 s{dst+1}, s{dst+1}, 0xffff')
        a(f's_mov_b32 s{dst+2}, {nbytes}'); a(f's_mov_b32 s{dst+3}, 0x20000')

    def stamp(self, name):
        if not self.stamps: return
        a = self.a
        j = self.nstamp; self.nstamp += 1
        self.stamp_names = getattr(self, 'stamp_names', []) + [name]
        a(f's_memtime s[{self.S_STAMP}:{self.S_STAMP+1}]')
        a('s_waitcnt lgkmcnt(0)')
        a(f'v_writelane_b32 v{self.vSTAMP}, s{self.S_STAMP}, {j}')

    def prologue(self):
        a, R = self.a, self.R
        a('s_cmp_ge_u32 s2, 256'); a('s_cbranch_scc1 L_end')
        a('s_load_dwordx16 s[4:19], s[0:1], 0')
        a('s_load_dwordx8 s[20:27], s[0:1], 64')
        self.vTID = 0
        R.alloc('v', 'tid', 1, at=0)
        self.vLANE = R.alloc('v', 'lane', 1)
        self.vSTAMP = R.alloc('v', 'stamp', 1)
        a(f'v_and_b32 v{self.vLANE}, 63, v0')
        a(f'v_lshrrev_b32 v{self.vSTAMP}, 6, v0')
        a('s_nop 0')
        a(f'v_readfirstlane_b32 s{self.S_W}, v{self.vSTAMP}')
        a(f's_and_b32 s{self.S_X}, s2, 7'); a(f's_lshr_b32 s{self.S_I}, s2, 3')
        T = self.T
        vt = R.alloc('v', 'pf', 2)
        a(f's_getpc_b64 s[{T}:{T+1}]')
        a.label('L_pc0')
        a(f's_lshl_b32 s{T+2}, s{self.S_I}, 2'); a(f's_add_u32 s{T+2}, s{T+2}, s{self.S_W}')
        a(f's_lshl_b32 s{T+2}, s{T+2}, PF_SHIFT')
        a(f'v_lshlrev_b32 v{vt}, PF_LSH, v{self.vLANE}'); a(f'v_add_u32 v{vt}, s{T+2}, v{vt}')
        a(f'v_min_u32 v{vt}, L_end-L_pc0, v{vt}')
        a(f'global_load_dword v{vt+1}, v{vt}, s[{T}:{T+1}]', vm='pf')
        self.stamp('start')
        a(f's_and_b32 s{T}, s{self.S_X}, 3'); a(f's_lshl_b32 s{T}, s{T}, 2'); a(f's_and_b32 s{T+1}, s{self.S_I}, 3')
        a(f's_add_u32 s{self.S_MT}, s{T}, s{T+1}')
        a(f's_lshr_b32 s{T}, s{self.S_X}, 2'); a(f's_lshl_b32 s{T}, s{T}, 3'); a(f's_lshr_b32 s{T+1}, s{self.S_I}, 2')
        a(f's_add_u32 s{self.S_NT}, s{T}, s{T+1}')
        a('s_waitcnt lgkmcnt(0)')
        P = self.S_PTR
        self.srd(self.SRD_K, P + 2, 2048 * 1024)
        self.srd(self.SRD_V, P + 4, 2048 * 1024)
        self.srd(self.SRD_SH, P + 6, 4096)
        self.srd(self.SRD_Q, P + 0, 2048 * 1024)
        self.srd(self.SRD_W1, P + 14, 512 * 3584)
        self.srd(self.SRD_W2, P + 16, 1792 * 1024)
        self.srd(self.SRD_WS, P + 22, WS_SIZE)
        a(f's_lshl_b32 s{T}, s{self.S_X}, 5'); a(f's_add_u32 s{T}, s{T}, s{self.S_I}'); a(f's_lshl_b32 s{T}, s{T}, 13')
        self.srd(self.SRD_SK, P + 8, 8192, add=T)
        a(f's_lshl_b32 s{T}, s{self.S_X}, 5'); a(f's_add_u32 s{T}, s{T}, s{self.S_I}'); a(f's_lshl_b32 s{T}, s{T}, 2')
        a(f's_load_dword s95, s[{P+10}:{P+11}], s{T}')
        self.srd(self.SRD_OUT, P + 18, 2048 * 1024)
        a('s_waitcnt lgkmcnt(0)')

    def p0_loads(self):
        a, R, T = self.a, self.R, self.T
        vb = R.alloc('v', 'kaddr', 5, align=1)
        t0 = R.alloc('v', 't0', 1); t1 = R.alloc('v', 't1', 1)
        a(f'v_and_b32 v{t0}, 7, v0'); a(f'v_lshlrev_b32 v{t0}, 4, v{t0}')
        a(f'v_lshrrev_b32 v{t1}, 3, v0'); a(f'v_lshlrev_b32 v{t1}, 11, v{t1}')
        a(f's_lshl_b32 s{T}, s{self.S_I}, 16'); a(f's_lshl_b32 s{T+1}, s{self.S_X}, 7')
        a(f's_add_u32 s{T}, s{T}, s{T+1}'); a(f's_sub_u32 s{T}, s{T}, 3072')
        a(f'v_add3_u32 v{vb}, v{t0}, v{t1}, s{T}')
        for j in range(1, 5): a(f'v_add_u32 v{vb+j}, {1024*j}, v{vb}')
        self.KR = R.alloc('v', 'KR', 20); self.VR = R.alloc('v', 'VR', 8)
        for j in range(5):
            a(f'buffer_load_dwordx4 {rr("v", self.KR+4*j, 4)}, v{vb+j}, s[{self.SRD_K}:{self.SRD_K+3}], 0 offen', vm='kv')
        for j in range(2):
            a(f'buffer_load_dwordx4 {rr("v", self.VR+4*j, 4)}, v{vb+3+j}, s[{self.SRD_V}:{self.SRD_V+3}], 0 offen', vm='kv')
        self.SHR = R.alloc('v', 'SHR', 4)
        a(f'v_lshlrev_b32 v{t0}, 4, v{self.vLANE}'); a(f's_lshl_b32 s{T}, s{self.S_X}, 9')
        a(f'buffer_load_dwordx4 {rr("v", self.SHR, 4)}, v{t0}, s[{self.SRD_SH}:{self.SRD_SH+3}], s{T} offen', vm='kv')
        R.release('kaddr')
        S_SIG, S_TA, S_TB, S_MASK = T + 2, T + 3, T + 4, T + 6
        self.S_W2MASK = 92
        a(f's_lshl_b32 s{S_SIG}, s{self.S_W}, 5'); a(f's_add_u32 s{S_SIG}, s{S_SIG}, s{self.S_I}')
        a(f's_cmp_lt_u32 s{S_SIG}, 56'); a(f's_cselect_b64 s[92:93], -1, 0'); a(f's_cselect_b32 s{S_SIG}, s{S_SIG}, 0')
        a(f's_mov_b32 s94, s{S_SIG}')
        a(f's_mul_hi_u32 s{T}, s{S_SIG}, 0x24924925')
        a(f's_mul_i32 s{T+1}, s{T}, 7'); a(f's_sub_u32 s{T+1}, s{S_SIG}, s{T+1}')
        a(f's_mul_i32 s{T}, s{T}, 14')
        a(f's_lshl_b32 s{S_TA}, s{T+1}, 1')
        a(f's_cmp_ge_u32 s{T+1}, 3'); a(f's_cselect_b32 s{S_TB}, 1, 0'); a(f's_add_u32 s{S_TA}, s{S_TA}, s{S_TB}')
        a(f's_cmp_eq_u32 s{T+1}, 6'); a(f's_cselect_b32 s{S_TA}, 6, s{S_TA}'); a(f's_cselect_b32 s{S_TB}, 7, 1')
        a(f's_add_u32 s{S_TA}, s{S_TA}, s{T}'); a(f's_add_u32 s{S_TB}, s{S_TB}, s{S_TA}')
        a(f's_lshl_b32 s{S_TA}, s{S_TA}, 14'); a(f's_lshl_b32 s{S_TB}, s{S_TB}, 14')
        a(f's_lshl_b32 s{T}, s{self.S_X}, 7'); a(f's_add_u32 s{S_TA}, s{S_TA}, s{T}'); a(f's_add_u32 s{S_TB}, s{S_TB}, s{T}')
        a(f'v_lshrrev_b32 v{t0}, 4, v{self.vLANE}'); a(f'v_lshlrev_b32 v{t0}, 12, v{t0}')
        a(f'v_and_b32 v{t1}, 15, v{self.vLANE}'); a(f'v_lshl_add_u32 v{t0}, v{t1}, 3, v{t0}')
        self.W2R = R.alloc('v', 'W2R', 16)
        a('s_mov_b64 exec, s[92:93]')
        for j in range(8):
            so = S_TA if j < 4 else S_TB
            a(f'buffer_load_dwordx2 {rr("v", self.W2R+2*j, 2)}, v{t0}, s[{self.SRD_W2}:{self.SRD_W2+3}], s{so} offen offset:{(j&3)*1024}', vm='w2')
        a('s_mov_b64 exec, -1')
        self.HR = R.alloc('v', 'HR', 16)
        self.HX = R.alloc('v', 'HX', 2)
        a(f'v_lshlrev_b32 v{t0}, 4, v0')
        for ch in range(2):
            a(f'v_add_u32 v{t1}, {ch*4096}, v{t0}') if ch else None
            va = t1 if ch else t0
            a(f'buffer_load_dwordx4 {rr("v", self.HR+8*ch, 4)}, v{va}, s[{self.SRD_SK}:{self.SRD_SK+3}], 0 offen', vm='hk')
            a(f'buffer_load_dwordx2 {rr("v", self.HR+8*ch+4, 2)}, v{va}, s[{self.SRD_SK}:{self.SRD_SK+3}], 0 offen offset:16', vm='hk')
        a(f'v_and_b32 v{t0}, 3, v{self.vLANE}'); a(f'v_lshrrev_b32 v{t1}, 2, v{self.vLANE}'); a(f'v_lshlrev_b32 v{t1}, 12, v{t1}')
        a(f'v_cmp_eq_u32 vcc, 3, v{t0}'); a(f'v_mov_b32 v{t0}, {OOB}')
        a(f'v_cndmask_b32 v{t0}, v{t0}, v{t1}, vcc')
        a(f'buffer_load_dwordx2 {rr("v", self.HX, 2)}, v{t0}, s[{self.SRD_SK}:{self.SRD_SK+3}], 0 offen', vm='hk')
        R.release('t0', 't1')

    def g1_setup(self):
        a, R, T = self.a, self.R, self.T
        L = self.vLANE
        t0 = R.alloc('v', 't0', 1); t1 = R.alloc('v', 't1', 1); t2 = R.alloc('v', 't2', 1)
        self.vQ = R.alloc('v', 'vQ', 1)
        a(f'v_lshrrev_b32 v{t0}, 3, v{L}'); a(f'v_and_b32 v{t1}, 7, v{L}')
        a(f'v_lshlrev_b32 v{t2}, 10, v{t0}'); a(f'v_lshl_add_u32 v{self.vQ}, v{t1}, 4, v{t2}')
        self.vBW = R.alloc('v', 'vBW', 1)
        a(f'v_xor_b32 v{t2}, v{t1}, v{t0}'); a(f'v_lshlrev_b32 v{t2}, 4, v{t2}'); a(f'v_lshl_add_u32 v{t2}, v{t0}, 7, v{t2}')
        a(f's_lshl_b32 s{T}, s{self.S_W}, 11'); a(f's_add_u32 s{T}, s{T}, {L_BNC}')
        a(f'v_add_u32 v{self.vBW}, s{T}, v{t2}')
        self.vBR = R.alloc('v', 'vBR', 2)
        a(f'v_and_b32 v{t0}, 7, v{L}')
        a(f'v_lshrrev_b32 v{t1}, 4, v{L}')
        a(f'v_xor_b32 v{t1}, v{t1}, v{t0}'); a(f'v_lshlrev_b32 v{t1}, 4, v{t1}')
        a(f'v_lshl_add_u32 v{t1}, v{t0}, 7, v{t1}')
        a(f'v_bfe_u32 v{t2}, v{L}, 3, 1'); a(f'v_lshl_add_u32 v{t1}, v{t2}, 10, v{t1}')
        a(f'v_add_u32 v{self.vBR}, s{T}, v{t1}'); a(f'v_xor_b32 v{self.vBR+1}, 64, v{self.vBR}')
        self.S_QO = 76
        a(f's_lshl_b32 s{T}, s{self.S_MT}, 17'); a(f's_lshl_b32 s{T+1}, s{self.S_W}, 15'); a(f's_add_u32 s76, s{T}, s{T+1}')
        for j in range(1, 4): a(f's_add_u32 s{76+j}, s76, {8192*j}')
        self.vW = R.alloc('v', 'vW', 7, align=1)
        a(f's_mov_b32 s{T}, 0x12492493')
        for m in range(7):
            a(f'v_add_u32 v{t0}, {64*m}, v{L}')
            a(f'v_mul_hi_u32 v{t1}, v{t0}, s{T}')
            a(f'v_mul_u32_u24 v{t2}, 14, v{t1}'); a(f'v_sub_u32 v{t0}, v{t0}, v{t2}')
            a(f'v_bfe_u32 v{t2}, v{t1}, 3, 1'); a(f'v_lshlrev_b32 v{t2}, 2, v{t2}'); a(f'v_xor_b32 v{t1}, v{t1}, v{t2}')
            a(f'v_mul_u32_u24 v{t1}, 3584, v{t1}'); a(f'v_lshl_add_u32 v{self.vW+m}, v{t0}, 4, v{t1}')
        self.S_WO, self.S_WL = 80, 81
        a(f's_mul_i32 s80, s{self.S_NT}, 224'); a(f's_mul_i32 s{T}, s{self.S_W}, {32*3584}'); a(f's_add_u32 s80, s80, s{T}')
        a(f's_mul_i32 s81, s{self.S_W}, 7168')
        if L_W1: a(f's_add_u32 s81, s81, {L_W1}')
        self.vA = R.alloc('v', 'vA', 4, align=1)
        self.vAC = R.alloc('v', 'vAC', 4, align=1)
        a(f'v_lshrrev_b32 v{t0}, 4, v{L}')
        a(f'v_bfe_u32 v{t1}, v{L}, 2, 2')
        a(f'v_and_b32 v{t2}, 1, v{t0}'); a(f'v_lshlrev_b32 v{t2}, 2, v{t2}'); a(f'v_xor_b32 v{t1}, v{t1}, v{t2}')
        a(f'v_lshl_add_u32 v{t1}, v{t0}, 3, v{t1}')
        a(f'v_xor_b32 v{t2}, 4, v{t1}')
        a(f'v_and_b32 v{t0}, 3, v{L}'); a(f'v_lshlrev_b32 v{t0}, 3, v{t0}')
        if L_W1: a(f'v_add_u32 v{t0}, {L_W1}, v{t0}')
        a(f'v_mul_u32_u24 v{t1}, 224, v{t1}'); a(f'v_add_u32 v{self.vA}, v{t1}, v{t0}')
        a(f'v_mul_u32_u24 v{t2}, 224, v{t2}'); a(f'v_add_u32 v{self.vA+1}, v{t2}, v{t0}')
        a(f'v_add_u32 v{self.vA+2}, 57344, v{self.vA}'); a(f'v_add_u32 v{self.vA+3}, 57344, v{self.vA+1}')
        a(f's_lshl_b32 s{T}, s{self.S_W}, 5')
        for j in range(4): a(f'v_add_u32 v{self.vAC+j}, s{T}, v{self.vA+j}')
        R.release('t0', 't1', 't2')
        self.QL = R.alloc('a', 'QL', 128)

    def g1_loads(self, part):
        a = self.a
        for n in (2 * part, 2 * part + 1):
            for m in range(7):
                a(f's_add_u32 m0, s81, {n*4*7168 + m*1024}')
                a('s_nop 0')
                a(f'buffer_load_dwordx4 v{self.vW+m}, s[{self.SRD_W1}:{self.SRD_W1+3}], s80 offen lds', vm=f'w1_{n}')
            a(f's_add_u32 s80, s80, {4*32*3584}')
            for kp in (2 * n, 2 * n + 1):
                for q in range(4):
                    d = self.QL + (kp * 4 + q) * 4
                    a(f'buffer_load_dwordx4 {rr("a", d, 4)}, v{self.vQ}, s[{self.SRD_Q}:{self.SRD_Q+3}], s{76+q} offen offset:{kp*128}', vm=f'q_{kp}')

    def p0_compute(self):
        a, R, T = self.a, self.R, self.T
        L = self.vLANE
        t0 = R.alloc('v', 't0', 1); t1 = R.alloc('v', 't1', 1)
        a.wait_vm('kv')
        a(f's_lshl_b32 s{T}, s{self.S_W}, 9'); a(f's_add_u32 s{T}, s{T}, {L_SHK}')
        a(f'v_lshlrev_b32 v{t0}, 4, v{L}'); a(f'v_add_u32 v{t0}, s{T}, v{t0}')
        a(f'v_cmp_gt_u32 vcc, 32, v{L}'); a('s_and_saveexec_b64 s[82:83], vcc')
        a(f'ds_write_b128 v{t0}, {rr("v", self.SHR, 4)}', lg='x')
        a('s_mov_b64 exec, s[82:83]')
        WR = R.alloc('v', 'WR', 16)
        a(f'v_and_b32 v{t0}, 7, v{L}'); a(f'v_lshlrev_b32 v{t0}, 6, v{t0}'); a(f'v_add_u32 v{t0}, s{T}, v{t0}')
        for j in range(4): a(f'ds_read_b128 {rr("v", WR+4*j, 4)}, v{t0} offset:{16*j}', lg='wr')
        vKS = R.alloc('v', 'vKS', 1)
        a(f'v_and_b32 v{t0}, 7, v0'); a(f'v_lshrrev_b32 v{t1}, 3, v0'); a(f'v_sub_u32 v{t1}, 31, v{t1}')
        a(f'v_lshlrev_b32 v{vKS}, 2, v{t0}'); a(f'v_xor_b32 v{t1}, v{t1}, v{vKS}'); a(f'v_lshlrev_b32 v{t1}, 2, v{t1}')
        a(f'v_lshl_add_u32 v{t1}, v{t0}, 10, v{t1}'); a(f'v_add_u32 v{vKS}, {L_BNC}, v{t1}')
        KP = R.alloc('v', 'KP', 10); WP = R.alloc('v', 'WP', 8); VP = R.alloc('v', 'VP', 4); RS = R.alloc('v', 'RS', 4); OD = R.alloc('v', 'OD', 2)
        a.wait_lg('wr')
        for c in range(4):
            for j in range(5):
                a(f'v_lshlrev_b32 v{KP+2*j}, 16, v{self.KR+4*j+c}'); a(f'v_and_b32 v{KP+2*j+1}, 0xffff0000, v{self.KR+4*j+c}')
            for j in range(2):
                a(f'v_lshlrev_b32 v{VP+2*j}, 16, v{self.VR+4*j+c}'); a(f'v_and_b32 v{VP+2*j+1}, 0xffff0000, v{self.VR+4*j+c}')
            for e in range(2):
                d0, d1 = WR + 4 * c + 2 * e, WR + 4 * c + 2 * e + 1
                a(f'v_lshlrev_b32 v{WP+0+e}, 16, v{d0}'); a(f'v_and_b32 v{WP+2+e}, 0xffff0000, v{d0}')
                a(f'v_lshlrev_b32 v{WP+4+e}, 16, v{d1}'); a(f'v_and_b32 v{WP+6+e}, 0xffff0000, v{d1}')
            for o in range(2):
                r = rr('v', RS + 2 * o, 2)
                a(f'v_pk_mul_f32 {r}, {rr("v", WP+6, 2)}, {rr("v", KP+2*(o+0), 2)}')
                a(f'v_pk_fma_f32 {r}, {rr("v", WP+4, 2)}, {rr("v", KP+2*(o+1), 2)}, {r}')
                a(f'v_pk_fma_f32 {r}, {rr("v", WP+2, 2)}, {rr("v", KP+2*(o+2), 2)}, {r}')
                a(f'v_pk_fma_f32 {r}, {rr("v", WP+0, 2)}, {rr("v", KP+2*(o+3), 2)}, {r}')
                a(f'v_pk_mul_f32 {r}, {r}, {rr("v", VP+2*o, 2)}')
            for e in range(2):
                a(f'v_cvt_pk_bf16_f32 v{OD+e}, v{RS+2+e}, v{RS+e}')
                a(f'ds_write_b32 v{vKS}, v{OD+e} offset:{(2*c+e)*128}', lg='kvs')
        R.release('KP', 'WP', 'VP', 'RS', 'OD', 'WR', 'KR', 'VR', 'SHR', 'vKS')
        a.wait_vm('hk')
        O = R.alloc('v', 'O', 12)
        vH = R.alloc('v', 'vH', 1)
        def copies(d, base):
            for j in range(4): a(f'v_alignbit_b32 v{O+j}, v{d+j+1}, v{d+j}, 16')
            for j in range(4): a(f'v_alignbit_b32 v{O+4+j}, v{d+j+2}, v{d+j+1}, 16')
            for j in range(4): a(f'v_mov_b32 v{O+8+j}, v{d+j+1}')
            a(f'ds_write_b128 v{vH}, {rr("v", d+2, 4)} offset:{base + 3*4160}', lg='hc')
            a(f'ds_write_b128 v{vH}, {rr("v", O, 4)} offset:{base}', lg='hc')
            a(f'ds_write_b128 v{vH}, {rr("v", O+4, 4)} offset:{base + 2*4160}', lg='hc')
            a(f'ds_write_b128 v{vH}, {rr("v", O+8, 4)} offset:{base + 4160}', lg='hc')
        a(f'v_lshlrev_b32 v{vH}, 4, v0'); a(f'v_add_u32 v{vH}, {L_HC + 64}, v{vH}')
        for ch in range(2): copies(self.HR + 8 * ch, ch * 16640)
        a(f'v_and_b32 v{t0}, 3, v{L}'); a(f'v_lshrrev_b32 v{t1}, 2, v{L}')
        a(f'v_mul_u32_u24 v{t1}, 16640, v{t1}'); a(f'v_lshl_add_u32 v{t0}, v{t0}, 4, v{t1}'); a(f'v_add_u32 v{vH}, {L_HC}, v{t0}')
        d = self.HR
        a(f'v_cmp_gt_u32 vcc, 8, v0'); a('s_and_saveexec_b64 s[82:83], vcc')
        a('s_cbranch_execz L_hx_skip')
        for j in range(4): a(f'v_mov_b32 v{d+j}, 0')
        a(f'v_mov_b32 v{d+4}, v{self.HX}'); a(f'v_mov_b32 v{d+5}, v{self.HX+1}')
        nlg = len(a.lg)
        copies(d, 0)
        a.label('L_hx_skip')
        a('s_mov_b64 exec, s[82:83]')
        R.release('O', 'vH', 'HR', 'HX')
        a.wait_vm('w2')
        WO = R.alloc('v', 'WO', 16)
        a('s_mov_b32 s82, 0x05040100'); a('s_mov_b32 s83, 0x07060302')
        for dl in range(4):
            for p in range(4):
                lo, hi = self.W2R + 2 * (2 * p) + (dl >> 1), self.W2R + 2 * (2 * p + 1) + (dl >> 1)
                a(f'v_perm_b32 v{WO+4*dl+p}, v{hi}, v{lo}, s{82 + (dl & 1)}')
        a(f's_mul_i32 s{T}, s{self.S_X}, {TILE_B}'); a(f's_lshl_b32 s{T+1}, s94, 12'); a(f's_add_u32 s{T}, s{T}, s{T+1}')
        a(f's_add_u32 s{T}, s{T}, {WS_W2F}')
        a(f'v_lshlrev_b32 v{t0}, 4, v{L}')
        a('s_mov_b64 exec, s[92:93]')
        for dl in range(4):
            a(f'buffer_store_dwordx4 {rr("v", WO+4*dl, 4)}, v{t0}, s[{self.SRD_WS}:{self.SRD_WS+3}], s{T} offen offset:{dl*1024} sc1', vm='p0st')
        a('s_mov_b64 exec, -1')
        R.release('W2R')
        a('s_waitcnt lgkmcnt(0)')
        a('s_barrier')
        KO = R.alloc('v', 'KO', 8)
        a(f'v_lshrrev_b32 v{t0}, 3, v0'); a(f'v_and_b32 v{t1}, 7, v0')
        vr = R.alloc('v', 'vr', 2)
        a(f'v_lshrrev_b32 v{vr}, 3, v{t0}'); a(f'v_xor_b32 v{vr}, v{vr}, v{t1}'); a(f'v_lshlrev_b32 v{vr}, 4, v{vr}')
        a(f'v_lshl_add_u32 v{vr}, v{t0}, 7, v{vr}'); a(f'v_add_u32 v{vr}, {L_BNC}, v{vr}')
        a(f'v_xor_b32 v{vr+1}, 64, v{vr}')
        a(f'ds_read_b128 {rr("v", KO, 4)}, v{vr}', lg='ko'); a(f'ds_read_b128 {rr("v", KO+4, 4)}, v{vr+1} offset:4096', lg='ko')
        a(f'v_lshlrev_b32 v{t0}, 12, v{t0}'); a(f'v_lshl_add_u32 v{t0}, v{t1}, 4, v{t0}')
        a(f's_lshl_b32 s{T}, s{self.S_X}, 18'); a(f's_lshl_b32 s{T+1}, s{self.S_I}, 7'); a(f's_sub_u32 s{T}, s{T}, s{T+1}')
        a(f's_add_u32 s{T}, s{T}, {WS_KVT + 3968}'); a(f's_add_u32 s{T+1}, s{T}, {32*4096}')
        a('s_waitcnt lgkmcnt(0)')
        a(f'buffer_store_dwordx4 {rr("v", KO, 4)}, v{t0}, s[{self.SRD_WS}:{self.SRD_WS+3}], s{T} offen sc1', vm='p0st')
        a(f'buffer_store_dwordx4 {rr("v", KO+4, 4)}, v{t0}, s[{self.SRD_WS}:{self.SRD_WS+3}], s{T+1} offen sc1', vm='p0st')
        R.release('t0', 't1', 'vr')
        self.pending_release = ['KO', 'WO']


    def signal(self, off_sgpr_or_const, tagname):
        a, R = self.a, self.R
        t = R.alloc('v', 'sig', 2)
        a(f'v_mov_b32 v{t}, s{off_sgpr_or_const}'); a(f'v_mov_b32 v{t+1}, 1')
        a(f's_cmp_eq_u32 s{self.S_W}, 0'); a('s_cselect_b64 exec, 1, 0')
        a(f'global_atomic_add v{t}, v{t+1}, s[{self.S_DBG}:{self.S_DBG+1}] sc1', vm=tagname)
        a('s_mov_b64 exec, -1')
        R.release('sig')

    def cnt_addr(self, dst, kind, src):
        a, T = self.a, self.T
        base = {'A': 0, 'H': 2, 'Y': 6}[kind]
        a(f's_and_b32 s{dst}, s{src}, 3'); a(f's_lshl_b32 s{dst}, s{dst}, 4'); a(f's_lshr_b32 s{T}, s{src}, 2')
        a(f's_add_u32 s{dst}, s{dst}, s{T}'); a(f's_add_u32 s{dst}, s{dst}, {base}'); a(f's_lshl_b32 s{dst}, s{dst}, 2')

    def g1_main(self):
        a, R, T = self.a, self.R, self.T
        self.ACC = R.alloc('v', 'ACC', 56); self.SX = R.alloc('v', 'SX', 8); self.GR = R.alloc('v', 'GR', 8); self.CL = R.alloc('v', 'CL', 8)
        AF = R.alloc('a', 'AF', 56); AC = R.alloc('a', 'AC', 16); BF = R.alloc('a', 'BF', 32); ON = R.alloc('a', 'ONES', 4)
        t0 = R.alloc('v', 't0', 1)
        a(f'v_mov_b32 v{t0}, 0x3f803f80')
        for j in range(4): a(f'v_accvgpr_write_b32 a{ON+j}, v{t0}')
        R.release('t0')
        def af(b, t): return AF + b * 28 + t * 4
        def ac(b, c): return AC + b * 8 + c * 4
        def bf(b, Tt, p): return BF + b * 16 + (Tt * 2 + p) * 4
        def a_reads(ks):
            b = ks & 1; hi = 2 if ks >= 8 else 0; off = (ks & 7) * 7168
            L = []
            for t in range(7):
                for hh in range(2):
                    L.append(f'ds_read_b64_tr_b16 {rr("a", af(b, t)+2*hh, 2)}, v{self.vA+hi+hh} offset:{off + t*32}')
            for c in range(2):
                for hh in range(2):
                    L.append(f'ds_read_b64_tr_b16 {rr("a", ac(b, c)+2*hh, 2)}, v{self.vAC+hi+hh} offset:{off + c*128}')
            return L
        def b_prep(kp, Tt):
            b = kp & 1
            L = []
            for h in range(2):
                L.append(f'ds_write_b128 v{self.vBW}, {rr("a", self.QL + (kp*4 + 2*Tt + h)*4, 4)} offset:{h*1024}')
            for p in range(2):
                L.append(f'ds_read_b128 {rr("a", bf(b, Tt, p), 4)}, v{self.vBR+p}')
            return L
        a.wait_vm('w1_0', 'q_0')
        a('s_barrier')
        self.stamp('g1_first')
        for x in b_prep(0, 0) + b_prep(0, 1) + a_reads(0): a(x, lg='x')
        a('s_waitcnt lgkmcnt(0)')
        self.cnt_addr(84, 'A', self.S_X)
        for ks in range(16):
            p, kp = ks & 1, ks >> 1
            ab, bb = ks & 1, kp & 1
            if (ks + 1) % 4 == 0 and ks + 1 < 16:
                n = (ks + 1) // 4
                a.wait_vm(f'w1_{n}')
                a('s_barrier')
                if n == 2: self.signal(84, 'sigA')
            fill = []
            if kp + 1 < 8:
                fill.append(('vm', f'q_{kp+1}'))
                fill += b_prep(kp + 1, p)
            if ks + 1 < 16: fill += a_reads(ks + 1)
            first = ks == 0
            mf = []
            for t in range(7):
                for Tt in range(2):
                    d = rr('v', self.ACC + (t * 2 + Tt) * 4, 4)
                    mf.append(f'v_mfma_f32_16x16x32_bf16 {d}, {rr("a", af(ab, t), 4)}, {rr("a", bf(bb, Tt, p), 4)}, {"0" if first else d}')
            for Tt in range(2):
                d = rr('v', self.SX + Tt * 4, 4)
                mf.append(f'v_mfma_f32_16x16x32_bf16 {d}, {rr("a", ON, 4)}, {rr("a", bf(bb, Tt, p), 4)}, {"0" if first else d}')
                d = rr('v', self.GR + Tt * 4, 4)
                mf.append(f'v_mfma_f32_16x16x32_bf16 {d}, {rr("a", bf(bb, Tt, p), 4)}, {rr("a", bf(bb, Tt, p), 4)}, {"0" if first else d}')
            for c in range(2):
                d = rr('v', self.CL + c * 4, 4)
                mf.append(f'v_mfma_f32_16x16x32_bf16 {d}, {rr("a", ac(ab, c), 4)}, {rr("a", ON, 4)}, {"0" if first else d}')
            fi = 0
            for j, m in enumerate(mf):
                a(m)
                k = 2 if j < 10 else 1
                while k > 0 and fi < len(fill):
                    f = fill[fi]; fi += 1
                    if isinstance(f, tuple): a.wait_vm(f[1])
                    else: a(f, lg='x'); k -= 1
            assert fi == len(fill)
            a('s_waitcnt lgkmcnt(0)')
        R.release('AF', 'AC', 'BF', 'ONES', 'QL', 'vQ', 'vBW', 'vBR', 'vW', 'vA', 'vAC')
        R.release(*self.pending_release)
        self.stamp('g1_done')

    def g1_epilogue(self):
        a, R, T = self.a, self.R, self.T
        L = self.vLANE
        t = R.alloc('v', 't', 8)
        a(f'v_lshrrev_b32 v{t}, 4, v{L}'); a(f'v_lshlrev_b32 v{t}, 4, v{t}')
        a(f's_lshl_b32 s{T}, s{self.S_W}, 6'); a(f's_add_u32 s{T}, s{T}, {L_COL}')
        a(f'v_add_u32 v{t+1}, s{T}, v{t}')
        a(f'v_and_b32 v{t+2}, 15, v{L}'); a(f'v_cmp_eq_u32 vcc, 0, v{t+2}')
        a('s_and_saveexec_b64 s[82:83], vcc')
        a(f'ds_write_b128 v{t+1}, {rr("v", self.CL, 4)}', lg='x')
        a(f'ds_write_b128 v{t+1}, {rr("v", self.CL+4, 4)} offset:256', lg='x')
        a('s_mov_b64 exec, s[82:83]')
        NM = R.alloc('v', 'NM', 4); RI = R.alloc('v', 'RI', 4); K1 = R.alloc('v', 'K1', 4)
        a(f'v_and_b32 v{t+3}, 3, v{L}')
        a(f'v_cmp_eq_u32 s[86:87], 1, v{t+3}'); a(f'v_cmp_eq_u32 s[88:89], 2, v{t+3}'); a(f'v_cmp_eq_u32 s[90:91], 3, v{t+3}')
        a(f'v_lshrrev_b32 v{t+4}, 2, v{t+2}'); a(f'v_lshl_add_u32 v{t+4}, v{t+4}, 4, v{t+2}'); a(f'v_lshlrev_b32 v{t+4}, 2, v{t+4}')
        for Tt in range(2):
            g = self.GR + 4 * Tt
            a(f'v_cndmask_b32 v{t+5}, v{g}, v{g+1}, s[86:87]'); a(f'v_cndmask_b32 v{t+5}, v{t+5}, v{g+2}, s[88:89]'); a(f'v_cndmask_b32 v{t+5}, v{t+5}, v{g+3}, s[90:91]')
            a(f'ds_bpermute_b32 v{t+6+Tt}, v{t+4}, v{t+5}', lg='bp')
        a('s_waitcnt lgkmcnt(0)')
        a('s_barrier')
        CB = R.alloc('v', 'CB', 28)
        a(f'v_add_u32 v{t+1}, {L_COL}, v{t}')
        for tt in range(7): a(f'ds_read_b128 {rr("v", CB+4*tt, 4)}, v{t+1} offset:{tt*64}', lg='cb')
        a('s_mov_b32 s82, 0x3b000000')
        a('s_mov_b32 s83, 0x3727c5ac')
        a('s_mov_b32 s85, 0xbfb8aa3b')
        for Tt in range(2):
            mean, ex2, tmp = t, t + 1, t + 2
            a(f'v_mul_f32 v{mean}, s82, v{self.SX+4*Tt}'); a(f'v_mul_f32 v{ex2}, s82, v{t+6+Tt}')
            a(f'v_fma_f32 v{ex2}, -v{mean}, v{mean}, v{ex2}'); a(f'v_max_f32 v{ex2}, 0, v{ex2}')
            a(f'v_cvt_pk_bf16_f32 v{tmp}, v{mean}, v{ex2}')
            a(f'v_lshlrev_b32 v{mean}, 16, v{tmp}'); a(f'v_and_b32 v{ex2}, 0xffff0000, v{tmp}')
            a(f'v_add_f32 v{ex2}, s83, v{ex2}'); a(f'v_cvt_pk_bf16_f32 v{tmp}, v{ex2}, v{ex2}'); a(f'v_lshlrev_b32 v{ex2}, 16, v{tmp}')
            a(f'v_sqrt_f32 v{ex2}, v{ex2}'); a(f'v_cvt_pk_bf16_f32 v{tmp}, v{ex2}, v{ex2}'); a(f'v_lshlrev_b32 v{ex2}, 16, v{tmp}')
            a(f'v_rcp_f32 v{RI+2*Tt}, v{ex2}')
            a(f'v_sub_f32 v{NM+2*Tt}, 0, v{mean}'); a(f'v_sub_f32 v{NM+2*Tt+1}, 0, v{mean}')
            a(f'v_mov_b32 v{RI+2*Tt+1}, v{RI+2*Tt}')
            a(f'v_mul_f32 v{K1+2*Tt}, s85, v{RI+2*Tt}'); a(f'v_mul_f32 v{K1+2*Tt+1}, s85, v{RI+2*Tt}')
        vs = R.alloc('v', 'vs', 4)
        a(f'v_lshlrev_b32 v{vs}, 3, v{L}')
        a(f's_lshl_b32 s{T}, s{self.S_MT}, 10'); a(f's_lshl_b32 s{T+1}, s{self.S_W}, 8'); a(f's_add_u32 s{T}, s{T}, s{T+1}'); a(f's_add_u32 s{T}, s{T}, {WS_STAT}')
        a(f's_cmp_eq_u32 s{self.S_NT}, 0'); a('s_cselect_b64 exec, 0xffff, 0')
        for Tt in range(2):
            a(f'v_sub_f32 v{vs+2}, 0, v{NM+2*Tt}'); a(f'v_mov_b32 v{vs+3}, v{RI+2*Tt}')
            a(f'buffer_store_dwordx2 {rr("v", vs+2, 2)}, v{vs}, s[{self.SRD_WS}:{self.SRD_WS+3}], s{T} offen offset:{Tt*128} sc1', vm='hst')
            a('s_nop 1')
        a('s_mov_b64 exec, -1')
        R.release('vs')
        a(f's_lshr_b32 s{T}, s{self.S_W}, 1'); a(f's_lshl_b32 s{T+1}, s{self.S_MT}, 1'); a(f's_add_u32 s{T}, s{T}, s{T+1}')
        a(f's_mul_i32 s{T}, s{T}, {TILE_B}'); a(f's_add_u32 s{T}, s{T}, {WS_HF}')
        a(f's_and_b32 s{T+1}, s{self.S_W}, 1'); a(f's_lshl_b32 s{T+1}, s{T+1}, 11'); a(f's_add_u32 s{T}, s{T}, s{T+1}')
        a(f's_lshr_b32 s{T+1}, s{self.S_NT}, 1'); a(f's_mul_i32 s{T+1}, s{T+1}, {7*4096}'); a(f's_add_u32 s{T}, s{T}, s{T+1}')
        a(f's_and_b32 s{T+1}, s{self.S_NT}, 1')
        a(f's_mul_i32 s{T+2}, s{T+1}, {3*4096}'); a(f's_add_u32 s86, s{T}, s{T+2}')
        a(f's_lshl_b32 s{T+2}, s{T+1}, 9'); a(f's_add_u32 s87, s{T}, s{T+2}'); a(f's_add_u32 s87, s87, {6*4096}')
        v16 = R.alloc('v', 'v16', 1); v8 = R.alloc('v', 'v8', 1)
        a(f'v_lshlrev_b32 v{v16}, 4, v{L}'); a(f'v_lshlrev_b32 v{v8}, 3, v{L}')
        a.wait_lg('cb')
        Z = R.alloc('v', 'Z', 8); E = R.alloc('v', 'E', 8); HP = R.alloc('v', 'HP', 8)
        hp_flip = 0
        def silu_tiles(tiles, Tt, dst):
            n = len(tiles)
            for u, tt in enumerate(tiles):
                for hlf in range(2):
                    acc = self.ACC + (tt * 2 + Tt) * 4 + 2 * hlf
                    a(f'v_pk_fma_f32 {rr("v", Z+4*u+2*hlf, 2)}, {rr("v", CB+4*tt+2*hlf, 2)}, {rr("v", NM+2*Tt, 2)}, {rr("v", acc, 2)}')
            for u in range(2 * n): a(f'v_pk_mul_f32 {rr("v", E+2*u, 2)}, {rr("v", Z+2*u, 2)}, {rr("v", K1+2*Tt, 2)}')
            for u in range(4 * n): a(f'v_exp_f32 v{E+u}, v{E+u}')
            for u in range(2 * n): a(f'v_pk_mul_f32 {rr("v", Z+2*u, 2)}, {rr("v", Z+2*u, 2)}, {rr("v", RI+2*Tt, 2)}')
            for u in range(2 * n): a(f'v_pk_add_f32 {rr("v", E+2*u, 2)}, {rr("v", E+2*u, 2)}, 1.0 op_sel_hi:[1,0]')
            for u in range(4 * n): a(f'v_rcp_f32 v{E+u}, v{E+u}')
            for u in range(2 * n): a(f'v_pk_mul_f32 {rr("v", Z+2*u, 2)}, {rr("v", Z+2*u, 2)}, {rr("v", E+2*u, 2)}')
            for u in range(2 * n): a(f'v_cvt_pk_bf16_f32 v{dst+u}, v{Z+2*u}, v{Z+2*u+1}')
        for m in range(3):
            for Tt in range(2):
                dst = HP + 4 * hp_flip; hp_flip ^= 1
                silu_tiles((2 * m, 2 * m + 1), Tt, dst)
                a(f's_add_u32 s{T}, s86, {m*4096}')
                a(f'buffer_store_dwordx4 {rr("v", dst, 4)}, v{v16}, s[{self.SRD_WS}:{self.SRD_WS+3}], s{T} offen offset:{Tt*1024} sc1', vm='hst')
        for Tt in range(2):
            dst = HP + 4 * hp_flip; hp_flip ^= 1
            silu_tiles((6,), Tt, dst)
            a(f'buffer_store_dwordx2 {rr("v", dst, 2)}, v{v8}, s[{self.SRD_WS}:{self.SRD_WS+3}], s87 offen offset:{Tt*1024} sc1', vm='hst')
        R.release('t', 'NM', 'RI', 'K1', 'CB', 'v16', 'v8', 'Z', 'E', 'HP', 'ACC', 'SX', 'GR', 'CL')
        self.stamp('g1_epi_done')

    def h_signal(self):
        a = self.a
        a.wait_vm('hst')
        a('s_barrier')
        self.cnt_addr(84, 'H', self.S_MT)
        self.signal(84, 'sigH')
        self.stamp('h_signaled')


    def poll_issue(self, name, off_sgpr):
        a, R = self.a, self.R
        t = R.alloc('v', 'poll_' + name, 2)
        setattr(self, 'poll_' + name, (t, off_sgpr))
        a(f'v_mov_b32 v{t}, s{off_sgpr}')
        a('s_mov_b64 exec, 1')
        a(f'global_load_dword v{t+1}, v{t}, s[{self.S_DBG}:{self.S_DBG+1}] sc1', vm='poll_' + name)
        a('s_mov_b64 exec, -1')

    def poll_check(self, name, target):
        a, R, T = self.a, self.R, self.T
        t, off = getattr(self, 'poll_' + name)
        a.wait_vm('poll_' + name)
        a(f'v_readfirstlane_b32 s{T}, v{t+1}')
        a(f's_cmp_ge_u32 s{T}, {target}'); a(f's_cbranch_scc1 L_pk_{name}')
        a(f's_mov_b32 s{T+1}, 0')
        a.label(f'L_pl_{name}')
        a.raw('    s_sleep 2')
        a.raw('    s_mov_b64 exec, 1')
        a.raw(f'    global_load_dword v{t+1}, v{t}, s[{self.S_DBG}:{self.S_DBG+1}] sc1')
        a.raw('    s_mov_b64 exec, -1')
        a.raw('    s_waitcnt vmcnt(0)')
        a.raw(f'    v_readfirstlane_b32 s{T}, v{t+1}')
        a.raw(f'    s_add_u32 s{T+1}, s{T+1}, 1')
        a.raw(f'    s_cmp_ge_u32 s{T}, {target}')
        a.raw(f'    s_cbranch_scc1 L_pk_{name}')
        a.raw(f'    s_cmp_lt_u32 s{T+1}, 0x40000')
        a.raw(f'    s_cbranch_scc1 L_pl_{name}')
        a.label(f'L_pk_{name}')
        R.release('poll_' + name)

    L_UR, L_RED, L_YS = 0, 16384, 32768

    def conv_zero(self):
        a, R = self.a, self.R
        z = R.alloc('v', 'z', 4); t = R.alloc('v', 'zt', 1)
        for j in range(4): a(f'v_mov_b32 v{z+j}, 0')
        a(f'v_lshlrev_b32 v{t}, 4, v0'); a(f'v_add_u32 v{t}, {self.L_UR + 5120}, v{t}')
        a(f'v_cmp_gt_u32 vcc, 155, v0'); a('s_and_saveexec_b64 s[82:83], vcc')
        a(f'ds_write_b128 v{t}, {rr("v", z, 4)}', lg='x'); a(f'ds_write_b128 v{t}, {rr("v", z, 4)} offset:7600', lg='x')
        a('s_mov_b64 exec, s[82:83]')
        R.release('z', 'zt')

    def ur_loads(self):
        a, R, T = self.a, self.R, self.T
        self.URR = R.alloc('v', 'URR', 8); t = R.alloc('v', 'urt', 1)
        a(f's_lshl_b32 s{T}, s{self.S_X}, 18'); a(f's_lshl_b32 s{T+1}, s{self.S_I}, 13'); a(f's_add_u32 s{T}, s{T}, s{T+1}')
        if WS_KVT: a(f's_add_u32 s{T}, s{T}, {WS_KVT}')
        a(f's_add_u32 s{T+1}, s{T}, 4096')
        a(f'v_lshlrev_b32 v{t}, 4, v0')
        a(f'buffer_load_dwordx4 {rr("v", self.URR, 4)}, v{t}, s[{self.SRD_WS}:{self.SRD_WS+3}], s{T} offen sc1', vm='ur')
        a(f'buffer_load_dwordx4 {rr("v", self.URR+4, 4)}, v{t}, s[{self.SRD_WS}:{self.SRD_WS+3}], s{T+1} offen sc1', vm='ur')
        R.release('urt')

    def conv(self):
        a, R, T = self.a, self.R, self.T
        L = self.vLANE
        t = R.alloc('v', 't', 6)
        a(f'v_lshrrev_b32 v{t}, 2, v0'); a(f'v_mul_u32_u24 v{t}, 80, v{t}'); a(f'v_and_b32 v{t+1}, 3, v0'); a(f'v_lshl_add_u32 v{t}, v{t+1}, 4, v{t}')
        if self.L_UR: a(f'v_add_u32 v{t}, {self.L_UR}, v{t}')
        a.wait_vm('ur')
        a(f'ds_write_b128 v{t}, {rr("v", self.URR, 4)}', lg='x'); a(f'ds_write_b128 v{t}, {rr("v", self.URR+4, 4)} offset:7600', lg='x')
        S_CH, S_ROLE = 86, 87
        a(f's_lshr_b32 s{S_CH}, s{self.S_W}, 1'); a(f's_and_b32 s{S_ROLE}, s{self.S_W}, 1')
        vHA = R.alloc('v', 'vHA', 1); vUB = R.alloc('v', 'vUB', 2); vUE = R.alloc('v', 'vUE', 1)
        a(f'v_and_b32 v{t+1}, 3, v{L}'); a(f'v_mul_u32_u24 v{t+1}, 4160, v{t+1}')
        a(f'v_bfe_u32 v{t+2}, v{L}, 2, 3'); a(f'v_lshl_add_u32 v{t+1}, v{t+2}, 3, v{t+1}')
        a(f'v_lshrrev_b32 v{t+2}, 5, v{L}'); a(f'v_lshl_add_u32 v{t+1}, v{t+2}, 4, v{t+1}')
        a(f's_mul_i32 s{T}, s{S_CH}, 16640'); a(f's_lshl_b32 s{T+1}, s{S_ROLE}, 10'); a(f's_add_u32 s{T}, s{T}, s{T+1}'); a(f's_add_u32 s{T}, s{T}, {L_HC}')
        a(f'v_add_u32 v{vHA}, s{T}, v{t+1}')
        a(f'v_and_b32 v{t+1}, 31, v{L}'); a(f'v_sub_u32 v{t+1}, 63, v{t+1}'); a(f'v_mul_u32_u24 v{t+1}, 80, v{t+1}')
        a(f's_mul_i32 s{T}, s{S_CH}, 7600'); a(f's_add_u32 s{T}, s{T}, {self.L_UR}')
        a(f'v_add_u32 v{t+1}, s{T}, v{t+1}')
        a(f's_mul_i32 s{T+1}, s{S_ROLE}, 2560')
        a(f'v_lshlrev_b32 v{t+3}, 3, v{t+2}'); a(f'v_sub_u32 v{t+3}, 8, v{t+3}'); a(f'v_add_u32 v{t+3}, v{t+3}, v{t+1}'); a(f'v_subrev_u32 v{vUE}, s{T+1}, v{t+3}')
        a(f'v_lshl_add_u32 v{t+1}, v{t+2}, 4, v{t+1}')
        a(f's_mul_i32 s{T+1}, s{S_ROLE}, 1280')
        a(f'v_add_u32 v{vUB}, s{T+1}, v{t+1}')
        a(f'v_subrev_u32 v{vUB+1}, 2560, v{vUB}')
        a('s_waitcnt lgkmcnt(0)')
        a('s_barrier')
        self.stamp('conv_start')
        R.release('URR')
        Y = R.alloc('v', 'Y', 32)
        NB = 3
        FR = R.alloc('v', 'FR', 20 * NB)
        def fr(b, j): return FR + b * 20 + 4 * j
        def reads(j):
            b = j % NB
            oa, ob = j * 32, (j >> 1) * 80 + (j & 1) * 32
            oa2, ob2 = oa + 2048, ob + 2560
            return [f'ds_read_b64 {rr("v", fr(b, 0), 2)}, v{vHA} offset:{oa}',
                    f'ds_read_b64 {rr("v", fr(b, 0)+2, 2)}, v{vHA} offset:{oa+8}',
                    f'ds_read_b128 {rr("v", fr(b, 1), 4)}, v{vUB} offset:{ob}',
                    f'ds_read_b128 {rr("v", fr(b, 2), 4)}, v{vUB+1} offset:{ob}',
                    f'ds_read_b64 {rr("v", fr(b, 3), 2)}, v{vHA} offset:{oa2}',
                    f'ds_read_b64 {rr("v", fr(b, 3)+2, 2)}, v{vHA} offset:{oa2+8}',
                    f'ds_read_b128 {rr("v", fr(b, 4), 4)}, v{vUB+1} offset:{ob2}']
        for j in range(2):
            for x in reads(j): a(x, lg=f'c{j}')
        fill_vm = list(getattr(self, 'conv_fill', []))
        for j in range(32):
            b = j % NB
            a.wait_lg(f'c{j}')
            nxt = reads(j + 2) if j + 2 < 32 else []
            y0, y1 = rr('v', Y, 16), rr('v', Y + 16, 16)
            c0 = '0' if j == 0 else y0; c1 = '0' if j == 0 else y1
            mf = [f'v_mfma_f32_32x32x16_bf16 {y0}, {rr("v", fr(b, 0), 4)}, {rr("v", fr(b, 1), 4)}, {c0}',
                  f'v_mfma_f32_32x32x16_bf16 {y1}, {rr("v", fr(b, 0), 4)}, {rr("v", fr(b, 2), 4)}, {c1}',
                  f'v_mfma_f32_32x32x16_bf16 {y1}, {rr("v", fr(b, 3), 4)}, {rr("v", fr(b, 4), 4)}, {y1}']
            parts = [nxt[0:3], nxt[3:5], nxt[5:7]]
            for m, pr in zip(mf, parts):
                a(m)
                for x in pr: a(x, lg=f'c{j+2}')
                if fill_vm:
                    f = fill_vm.pop(0)
                    f()
        for f in fill_vm: f()
        R.release('FR', 'vHA', 'vUB')
        self.stamp('conv_main_done')
        a('s_nop 7'); a('s_nop 3')
        a(f's_cmp_eq_u32 s{S_ROLE}, 0'); a('s_cbranch_scc1 L_noswap')
        for j in range(16): a(f'v_swap_b32 v{Y+j}, v{Y+16+j}')
        a.label('L_noswap')
        a(f's_lshl_b32 s{T}, s{self.S_W}, 12'); a(f's_add_u32 s{T}, s{T}, {self.L_RED}')
        a(f'v_lshlrev_b32 v{t}, 4, v{L}'); a(f'v_add_u32 v{t+1}, s{T}, v{t}')
        for j in range(4): a(f'ds_write_b128 v{t+1}, {rr("v", Y+16+4*j, 4)} offset:{j*1024}', lg='x')
        a(f's_xor_b32 s{T}, s{T}, 4096'); a(f'v_add_u32 v{t+1}, s{T}, v{t}')
        UU = R.alloc('v', 'UU', 8)
        for j in range(4): a(f'ds_read_b64 {rr("v", UU+2*j, 2)}, v{vUE} offset:{48-16*j}', lg='x')
        a('s_waitcnt lgkmcnt(0)')
        a('s_barrier')
        PT = R.alloc('v', 'PT', 16)
        for j in range(4): a(f'ds_read_b128 {rr("v", PT+4*j, 4)}, v{t+1} offset:{j*1024}', lg=f'pt{j}')
        a(f'v_and_b32 v{t+2}, 31, v{L}'); a(f'v_mul_u32_u24 v{t+2}, 80, v{t+2}'); a(f'v_lshrrev_b32 v{t+3}, 5, v{L}'); a(f'v_lshl_add_u32 v{t+2}, v{t+3}, 3, v{t+2}')
        a(f's_mul_i32 s{T}, s{S_CH}, 5120'); a(f's_mul_i32 s{T+1}, s{S_ROLE}, 2560'); a(f's_add_u32 s{T}, s{T}, s{T+1}'); a(f's_add_u32 s{T}, s{T}, {self.L_YS}')
        a(f'v_add_u32 v{t+2}, s{T}, v{t+2}')
        DD = R.alloc('v', 'DD', 2); U4 = R.alloc('v', 'U4', 4); OP = R.alloc('v', 'OP', 2)
        a(f's_lshl_b32 s{T}, s95, 16'); a(f's_and_b32 s{T+1}, s95, 0xffff0000'); a(f's_cmp_eq_u32 s{S_CH}, 0'); a(f's_cselect_b32 s{T}, s{T}, s{T+1}')
        a(f'v_mov_b32 v{DD}, s{T}'); a(f'v_mov_b32 v{DD+1}, s{T}')
        for j in range(4):
            a.wait_lg(f'pt{j}')
            for h in range(2):
                r = rr('v', Y + 4 * j + 2 * h, 2)
                a(f'v_pk_add_f32 {r}, {r}, {rr("v", PT+4*j+2*h, 2)}')
            d0, d1 = UU + 2 * j, UU + 2 * j + 1
            a(f'v_and_b32 v{U4}, 0xffff0000, v{d1}'); a(f'v_lshlrev_b32 v{U4+1}, 16, v{d1}')
            a(f'v_and_b32 v{U4+2}, 0xffff0000, v{d0}'); a(f'v_lshlrev_b32 v{U4+3}, 16, v{d0}')
            for h in range(2):
                r = rr('v', Y + 4 * j + 2 * h, 2)
                a(f'v_pk_fma_f32 {r}, {rr("v", U4+2*h, 2)}, {rr("v", DD, 2)}, {r}')
            a(f'v_cvt_pk_bf16_f32 v{OP}, v{Y+4*j}, v{Y+4*j+1}'); a(f'v_cvt_pk_bf16_f32 v{OP+1}, v{Y+4*j+2}, v{Y+4*j+3}')
            a(f'ds_write_b64 v{t+2}, {rr("v", OP, 2)} offset:{16*j}', lg='x')
            a('s_nop 0')
        R.release('Y', 'UU', 'PT', 'DD', 'U4', 'OP', 'vUE')
        a('s_waitcnt lgkmcnt(0)')
        a('s_barrier')
        YO = R.alloc('v', 'YO', 8)
        a(f'v_lshrrev_b32 v{t}, 2, v0'); a(f'v_mul_u32_u24 v{t}, 80, v{t}'); a(f'v_and_b32 v{t+1}, 3, v0'); a(f'v_lshl_add_u32 v{t}, v{t+1}, 4, v{t}')
        a(f'v_add_u32 v{t}, {self.L_YS}, v{t}')
        a(f'ds_read_b128 {rr("v", YO, 4)}, v{t}', lg='x'); a(f'ds_read_b128 {rr("v", YO+4, 4)}, v{t} offset:5120', lg='x')
        a(f's_lshl_b32 s{T}, s{self.S_X}, 18'); a(f's_lshl_b32 s{T+1}, s{self.S_I}, 13'); a(f's_add_u32 s{T}, s{T}, s{T+1}'); a(f's_add_u32 s{T}, s{T}, {WS_Y2T}')
        a(f's_add_u32 s{T+1}, s{T}, 4096')
        a(f'v_lshlrev_b32 v{t+1}, 4, v0')
        a('s_waitcnt lgkmcnt(0)')
        a(f'buffer_store_dwordx4 {rr("v", YO, 4)}, v{t+1}, s[{self.SRD_WS}:{self.SRD_WS+3}], s{T} offen sc1', vm='yst')
        a(f'buffer_store_dwordx4 {rr("v", YO+4, 4)}, v{t+1}, s[{self.SRD_WS}:{self.SRD_WS+3}], s{T+1} offen sc1', vm='yst')
        self.stamp('conv_done')
        self.pending_release = ['YO']
        R.release('t')

    def y_signal(self):
        a = self.a
        a.wait_vm('yst')
        a('s_barrier')
        self.cnt_addr(84, 'Y', self.S_X)
        self.signal(84, 'sigY')
        self.R.release(*self.pending_release)
        self.stamp('y_signaled')


    S_MT64, S_DT, S_W2O, S_HO = 88, 89, 90, 91
    NBH = 6

    def g2_setup(self):
        a, R, T = self.a, self.R, self.T
        L = self.vLANE
        a(f's_lshl_b32 s{self.S_MT64}, s{self.S_X}, 2'); a(f's_and_b32 s{T}, s{self.S_I}, 3'); a(f's_add_u32 s{self.S_MT64}, s{self.S_MT64}, s{T}')
        a(f's_lshr_b32 s{self.S_DT}, s{self.S_I}, 2')
        a(f's_mul_i32 s{T}, s{self.S_W}, {14*4096}')
        a(f's_mul_i32 s{self.S_W2O}, s{self.S_DT}, {TILE_B}'); a(f's_add_u32 s{self.S_W2O}, s{self.S_W2O}, s{T}'); a(f's_add_u32 s{self.S_W2O}, s{self.S_W2O}, {WS_W2F}')
        a(f's_mul_i32 s{self.S_HO}, s{self.S_MT64}, {TILE_B}'); a(f's_add_u32 s{self.S_HO}, s{self.S_HO}, s{T}'); a(f's_add_u32 s{self.S_HO}, s{self.S_HO}, {WS_HF}')
        self.vL16 = R.alloc('v', 'vL16', 1)
        a(f'v_lshlrev_b32 v{self.vL16}, 4, v{L}')
        self.vH16 = R.alloc('v', 'vH16', 4, align=1); self.vH8 = R.alloc('v', 'vH8', 4, align=1)
        for u in range(4):
            a(f's_add_u32 s{T}, s{self.S_W}, {u}'); a(f's_and_b32 s{T}, s{T}, 3'); a(f's_lshl_b32 s{T}, s{T}, 10')
            a(f'v_add_u32 v{self.vH16+u}, s{T}, v{self.vL16}')
            a(f'v_lshrrev_b32 v{self.vH8+u}, 1, v{self.vL16}'); a(f'v_add_u32 v{self.vH8+u}, s{T}, v{self.vH8+u}')
        self.W2A = R.alloc('a', 'W2A', 224)

    def w2_fill(self):
        a = self.a
        L = []
        for sg in range(14):
            for dl in range(4):
                def f(sg=sg, dl=dl):
                    d = self.W2A + (sg * 4 + dl) * 4
                    a(f'buffer_load_dwordx4 {rr("a", d, 4)}, v{self.vL16}, s[{self.SRD_WS}:{self.SRD_WS+3}], s{self.S_W2O} offen offset:{dl*1024} sc1', vm=f'w2f{sg}')
                    if dl == 3: a(f's_add_u32 s{self.S_W2O}, s{self.S_W2O}, 4096')
                L.append(f)
        return L

    def h_load(self, sg):
        a = self.a
        b = sg % self.NBH
        for u in range(4):
            d = self.HB + b * 16 + u * 4
            if sg % 7 == 6:
                a(f'buffer_load_dwordx2 {rr("v", d, 2)}, v{self.vH8+u}, s[{self.SRD_WS}:{self.SRD_WS+3}], s{self.S_HO} offen sc1', vm=f'h{sg}')
                a(f'buffer_load_dwordx2 {rr("v", d+2, 2)}, v{self.vH8+u}, s[{self.SRD_WS}:{self.SRD_WS+3}], s{self.S_HO} offen offset:512 sc1', vm=f'h{sg}')
            else:
                a(f'buffer_load_dwordx4 {rr("v", d, 4)}, v{self.vH16+u}, s[{self.SRD_WS}:{self.SRD_WS+3}], s{self.S_HO} offen sc1', vm=f'h{sg}')
        a(f's_add_u32 s{self.S_HO}, s{self.S_HO}, 4096')

    L_RED2, L_YT = 0, 65536

    def g2(self):
        a, R, T = self.a, self.R, self.T
        L = self.vLANE
        ACC = R.alloc('v', 'ACC2', 64)
        def acc(dl, u): return ACC + (dl * 4 + u) * 4
        self.stamp('g2_start')
        for sg in range(14):
            a.wait_vm(f'h{sg}', f'w2f{sg}')
            b = sg % self.NBH
            for dl in range(4):
                for u in range(4):
                    d = rr('v', acc(dl, u), 4)
                    a(f'v_mfma_f32_16x16x32_bf16 {d}, {rr("a", self.W2A+(sg*4+dl)*4, 4)}, {rr("v", self.HB+b*16+u*4, 4)}, {"0" if sg == 0 else d}')
            if sg + self.NBH < 14: self.h_load(sg + self.NBH)
        R.release('W2A', 'HB', 'vH16', 'vH8')
        self.stamp('g2_main_done')
        t = R.alloc('v', 't', 8)
        self.cnt_addr(85, 'Y', self.S_DT)
        self.poll_issue('Y', 85)
        XR = R.alloc('v', 'XR', 8); ST = R.alloc('v', 'ST', 2); vO = R.alloc('v', 'vO', 1)
        a(f'v_and_b32 v{t}, 15, v{L}'); a(f'v_lshrrev_b32 v{t+1}, 4, v{L}')
        a(f's_lshl_b32 s{T}, s{self.S_MT64}, 6'); a(f's_lshl_b32 s{T+1}, s{self.S_W}, 4'); a(f's_add_u32 s{T}, s{T}, s{T+1}')
        a(f'v_add_u32 v{t}, s{T}, v{t}')
        a(f'v_lshlrev_b32 v{vO}, 10, v{t}'); a(f'v_lshl_add_u32 v{vO}, v{t+1}, 5, v{vO}')
        a(f's_lshl_b32 s{T}, s{self.S_DT}, 7'); a(f'v_add_u32 v{vO}, s{T}, v{vO}')
        a(f'buffer_load_dwordx4 {rr("v", XR, 4)}, v{vO}, s[{self.SRD_Q}:{self.SRD_Q+3}], 0 offen', vm='xr')
        a(f'buffer_load_dwordx4 {rr("v", XR+4, 4)}, v{vO}, s[{self.SRD_Q}:{self.SRD_Q+3}], 0 offen offset:16', vm='xr')
        a(f'v_lshlrev_b32 v{t}, 3, v{t}'); a(f's_mov_b32 s{T}, {WS_STAT}')
        a(f'buffer_load_dwordx2 {rr("v", ST, 2)}, v{t}, s[{self.SRD_WS}:{self.SRD_WS+3}], s{T} offen sc1', vm='xr')
        a('s_barrier')
        for u in range(1, 4):
            a(f's_add_u32 s{T}, s{self.S_W}, {u}'); a(f's_and_b32 s{T}, s{T}, 3'); a(f's_mul_i32 s{T}, s{T}, {3*4096}'); a(f's_add_u32 s{T}, s{T}, {self.L_RED2 + (u-1)*4096}')
            a(f'v_add_u32 v{t}, s{T}, v{self.vL16}')
            for dl in range(4): a(f'ds_write_b128 v{t}, {rr("v", acc(dl, u), 4)} offset:{dl*1024}', lg='x')
        self.poll_check('Y', 32)
        YR = R.alloc('v', 'YR', 8)
        a(f'v_lshrrev_b32 v{t}, 3, v0'); a(f'v_and_b32 v{t+1}, 7, v0')
        a(f'v_lshlrev_b32 v{t+2}, 12, v{t}'); a(f'v_lshl_add_u32 v{t+2}, v{t+1}, 4, v{t+2}')
        a(f's_lshl_b32 s{T}, s{self.S_DT}, 18'); a(f's_lshl_b32 s{T+1}, s{self.S_MT64}, 7'); a(f's_add_u32 s{T}, s{T}, s{T+1}'); a(f's_add_u32 s{T}, s{T}, {WS_Y2T}')
        a(f's_add_u32 s{T+1}, s{T}, {32*4096}')
        a(f'buffer_load_dwordx4 {rr("v", YR, 4)}, v{t+2}, s[{self.SRD_WS}:{self.SRD_WS+3}], s{T} offen sc1', vm='yr')
        a(f'buffer_load_dwordx4 {rr("v", YR+4, 4)}, v{t+2}, s[{self.SRD_WS}:{self.SRD_WS+3}], s{T+1} offen sc1', vm='yr')
        a(f'v_mul_u32_u24 v{t+2}, 144, v{t}'); a(f'v_lshl_add_u32 v{t+2}, v{t+1}, 4, v{t+2}'); a(f'v_add_u32 v{t+2}, {self.L_YT}, v{t+2}')
        a.wait_vm('yr')
        a(f'ds_write_b128 v{t+2}, {rr("v", YR, 4)}', lg='x'); a(f'ds_write_b128 v{t+2}, {rr("v", YR+4, 4)} offset:{32*144}', lg='x')
        a('s_waitcnt lgkmcnt(0)')
        a('s_barrier')
        self.stamp('g2_red_written')
        R.release('YR')
        PR = R.alloc('v', 'PR', 16)
        a(f's_mul_i32 s{T}, s{self.S_W}, {3*4096}'); a(f's_add_u32 s{T}, s{T}, {self.L_RED2}')
        a(f'v_add_u32 v{t}, s{T}, v{self.vL16}')
        YV = R.alloc('v', 'YV', 8)
        a(f'v_lshrrev_b32 v{t+1}, 4, v{L}'); a(f'v_lshlrev_b32 v{t+1}, 4, v{t+1}'); a(f'v_bfe_u32 v{t+2}, v{L}, 2, 2'); a(f'v_add_u32 v{t+1}, v{t+1}, v{t+2}')
        a(f'v_mul_u32_u24 v{t+1}, 144, v{t+1}'); a(f'v_and_b32 v{t+2}, 3, v{L}'); a(f'v_lshl_add_u32 v{t+1}, v{t+2}, 3, v{t+1}')
        a(f's_lshl_b32 s{T}, s{self.S_W}, 5'); a(f's_add_u32 s{T}, s{T}, {self.L_YT}'); a(f'v_add_u32 v{t+1}, s{T}, v{t+1}')
        for r in range(4): a(f'ds_read_b64_tr_b16 {rr("v", YV+2*r, 2)}, v{t+1} offset:{r*4*144}', lg='yv')
        for u in range(3):
            for dl in range(4): a(f'ds_read_b128 {rr("v", PR+4*dl, 4)}, v{t} offset:{u*4096+dl*1024}', lg=f'pr{u}')
            a.wait_lg(f'pr{u}')
            for dl in range(4):
                for h in range(2):
                    r_ = rr('v', acc(dl, 0) + 2 * h, 2)
                    a(f'v_pk_add_f32 {r_}, {r_}, {rr("v", PR+4*dl+2*h, 2)}')
        R.release('PR')
        XU = R.alloc('v', 'XU', 16); YU = R.alloc('v', 'YU', 16); NM = R.alloc('v', 'NM', 4); OD = R.alloc('v', 'OD', 8)
        a.wait_vm('xr')
        for r in range(4):
            for dl in range(4):
                sx, sy = XR + 2 * r + (dl >> 1), YV + 2 * r + (dl >> 1)
                if dl & 1:
                    a(f'v_and_b32 v{XU+4*dl+r}, 0xffff0000, v{sx}'); a(f'v_and_b32 v{YU+4*dl+r}, 0xffff0000, v{sy}')
                else:
                    a(f'v_lshlrev_b32 v{XU+4*dl+r}, 16, v{sx}'); a(f'v_lshlrev_b32 v{YU+4*dl+r}, 16, v{sy}')
        a(f'v_sub_f32 v{NM}, 0, v{ST}'); a(f'v_sub_f32 v{NM+1}, 0, v{ST}'); a(f'v_mov_b32 v{NM+2}, v{ST+1}'); a(f'v_mov_b32 v{NM+3}, v{ST+1}')
        TT = R.alloc('v', 'TT', 2)
        for dl in range(4):
            for h in range(2):
                x2, y2, b2, tt = rr('v', XU+4*dl+2*h, 2), rr('v', YU+4*dl+2*h, 2), rr('v', acc(dl, 0)+2*h, 2), rr('v', TT, 2)
                a(f'v_pk_add_f32 {tt}, {x2}, {rr("v", NM, 2)}')
                a(f'v_pk_mul_f32 {tt}, {tt}, {rr("v", NM+2, 2)}')
                a(f'v_pk_fma_f32 {tt}, {tt}, {y2}, {x2}')
                a(f'v_pk_add_f32 {b2}, {b2}, {tt}')
        for r in range(4):
            for h in range(2):
                a(f'v_cvt_pk_bf16_f32 v{OD+2*r+h}, v{acc(2*h, 0)+r}, v{acc(2*h+1, 0)+r}')
        a(f'buffer_store_dwordx4 {rr("v", OD, 4)}, v{vO}, s[{self.SRD_OUT}:{self.SRD_OUT+3}], 0 offen', vm='out')
        a(f'buffer_store_dwordx4 {rr("v", OD+4, 4)}, v{vO}, s[{self.SRD_OUT}:{self.SRD_OUT+3}], 0 offen offset:16', vm='out')
        self.stamp('end')

    def finish(self):
        a = self.a
        if self.stamps:
            T = self.T
            a(f's_lshl_b32 s{T}, s2, 2'); a(f's_add_u32 s{T}, s{T}, s{self.S_W}'); a(f's_lshl_b32 s{T}, s{T}, 8'); a(f's_add_u32 s{T}, s{T}, 0xF00000')
            a(f's_mov_b32 s{self.SRD_WS+2}, 0x1000000')
            t = self.R.alloc('v', 'fin', 1)
            a(f'v_lshlrev_b32 v{t}, 2, v{self.vLANE}')
            a(f'buffer_store_dword v{self.vSTAMP}, v{t}, s[{self.SRD_WS}:{self.SRD_WS+3}], s{T} offen')
        a('s_waitcnt vmcnt(0)')
        a.label('L_end')
        a('s_endpgm')

    def build(self):
        self.prologue()
        self.p0_loads()
        self.g1_setup()
        self.g1_loads(0)
        self.p0_compute()
        self.g1_loads(1)
        self.g1_main()
        if self.stage >= 2:
            self.cnt_addr(85, 'A', self.S_X)
            self.poll_issue('A', 85)
        self.g1_epilogue()
        self.h_signal()
        if self.stage >= 2:
            self.conv_zero()
            self.poll_check('A', 32)
            self.ur_loads()
            if self.stage >= 3:
                self.g2_setup()
                self.cnt_addr(85, 'A', self.S_DT)
                self.poll_issue('A2', 85)
                self.poll_check('A2', 32)
                self.conv_fill = self.w2_fill()
                self.HB = self.R.alloc('v', 'HB', 16 * self.NBH)
            self.conv()
            if self.stage >= 3:
                self.a(f's_lshr_b32 s{self.T+1}, s{self.S_MT64}, 1')
                self.cnt_addr(85, 'H', self.T + 1)
                self.poll_issue('H', 85)
                self.poll_check('H', 16)
                for sg in range(self.NBH): self.h_load(sg)
            self.y_signal()
        if self.stage >= 3:
            self.g2()
        self.finish()
        self.a.finalize()
        body = self.a.text()
        ninstr = sum(1 for l in body.splitlines() if l.startswith('    '))
        est = ninstr * 8
        lsh = 2
        while 128 * (64 << lsh) < est: lsh += 1
        body = body.replace('PF_SHIFT', str(lsh + 6)).replace('PF_LSH', str(lsh))
        hdr = open('cdna_kernels/' + KNAME[:-7] + '.s.ref').read().split('; Override launch geometry')[0]
        out = hdr
        out += '; Generated by my own generator script (gen/kgen.py): fused single-launch kernel.\n'
        out += f'; @launch grid=(256,1,1) block=(256,1,1) lds={LDS_BYTES}\n'
        out += '.amdgcn_target "amdgcn-amd-amdhsa--gfx950"\n.text\n'
        out += f'.globl {KNAME}\n.p2align 8\n.type {KNAME},@function\n{KNAME}:\n'
        out += body
        nv = 512
        out += f'''.section .rodata,"a"
.p2align 6
.amdhsa_kernel {KNAME}
  .amdhsa_next_free_vgpr {nv}
  .amdhsa_next_free_sgpr 102
  .amdhsa_accum_offset 256
  .amdhsa_group_segment_fixed_size 0
  .amdhsa_kernarg_size 96
  .amdhsa_user_sgpr_count 2
  .amdhsa_user_sgpr_kernarg_segment_ptr 1
  .amdhsa_system_sgpr_workgroup_id_x 1
  .amdhsa_float_denorm_mode_32 3
.end_amdhsa_kernel
'''
        return out

if __name__ == '__main__':
    out = sys.argv[1]
    stage = int(sys.argv[2]) if len(sys.argv) > 2 else 99
    stamps = len(sys.argv) > 3 and sys.argv[3] == 'stamps'
    k = K(stage, stamps)
    s = k.build()
    open(out, 'w').write(s)
    print('instrs', sum(1 for l in s.splitlines() if l.startswith('    ')), 'nops', k.a.nops_inserted, 'vgpr hi', k.R.hi)
    if stamps: print('stamps', k.stamp_names)
```

```python
import sys
from asmlib import Asm, Regs, rr

KNAME = "parallel_sum__ssm_conv_h3__dense_activation_silu__prompt_kernel"

WS_KVT  = 0x000000
WS_W2F  = 0x200000
WS_HF   = 0x400000
WS_STAT = 0xB00000
WS_Y2T  = 0xC00000
WS_SIZE = 0xE00000
TILE_B  = 56 * 4096

SLOT   = 30720
L_HC   = 122880
L_KVS  = L_HC
L_SHK  = 156160
L_COL  = L_SHK + 2048
L_UR, L_RED, L_YS = 0, 16384, 32768
L_RED2, L_YT = 0, 65536
LDS_BYTES = 160 * 1024
OOB = 0x7FFFFFF0

class K:
    SRD_Q, SRD_K, SRD_V, SRD_W1, SRD_W2, SRD_WS, SRD_SK, SRD_SH, SRD_OUT = 28, 32, 36, 40, 44, 48, 52, 56, 60
    S_PTR = 4
    S_W, S_X, S_I, S_MT, S_NT = 68, 69, 70, 71, 72
    S_DBG = 24
    T = 74
    S_QO = 76
    S_WO, S_WL = 80, 81
    S_M3 = 64
    S_MT64, S_DT, S_W2O, S_HO = 88, 89, 90, 91
    S_STAMP = 96
    NBH = 6

    def __init__(self, stamps=False, opt=None):
        self.a = Asm(); self.R = Regs(); self.stamps = stamps; self.opt = opt or {}
        self.nstamp = 0; self.stamp_names = []
        self.fq = []; self.f_every = 0; self.f_cnt = 0; self._in_fill = False
        self.a.hook = None

    def o(self, k, d):
        v = type(d)(self.opt.get(k, d))
        return '' if v == 'none' else v

    def v(self, text):
        self.a(text)
        if self.fq and self.f_every:
            self.f_cnt += 1
            if self.f_cnt >= self.f_every:
                self.f_cnt = 0
                self.fq.pop(0)()
    def flush_fill(self):
        while self.fq: self.fq.pop(0)()

    def srd(self, dst, ptr, nbytes, add=None):
        a = self.a
        if add is None:
            a(f's_mov_b32 s{dst}, s{ptr}'); a(f's_and_b32 s{dst+1}, s{ptr+1}, 0xffff')
        else:
            a(f's_add_u32 s{dst}, s{ptr}, s{add}'); a(f's_addc_u32 s{dst+1}, s{ptr+1}, 0'); a(f's_and_b32 s{dst+1}, s{dst+1}, 0xffff')
        a(f's_mov_b32 s{dst+2}, {nbytes}'); a(f's_mov_b32 s{dst+3}, 0x20000')
    def D(self, s): return f's[{s}:{s+3}]'

    def stamp(self, name):
        if not self.stamps: return
        a = self.a
        j = self.nstamp; self.nstamp += 1; self.stamp_names.append(name)
        a(f's_memtime s[{self.S_STAMP}:{self.S_STAMP+1}]')
        lg = list(a.lg)
        a('s_waitcnt lgkmcnt(0)')
        a(f'v_writelane_b32 v{self.vSTAMP}, s{self.S_STAMP}, {j}')

    def prologue(self):
        a, R, T = self.a, self.R, self.T
        a('s_cmp_ge_u32 s2, 256'); a('s_cbranch_scc1 L_end')
        a('s_load_dwordx16 s[4:19], s[0:1], 0')
        a('s_load_dwordx8 s[20:27], s[0:1], 64')
        R.alloc('v', 'tid', 1, at=0)
        self.vLANE = R.alloc('v', 'lane', 1); self.vSTAMP = R.alloc('v', 'stamp', 1)
        a(f'v_and_b32 v{self.vLANE}, 63, v0')
        a(f'v_lshrrev_b32 v{self.vSTAMP}, 6, v0')
        a(f's_and_b32 s{self.S_X}, s2, 7')
        a(f'v_readfirstlane_b32 s{self.S_W}, v{self.vSTAMP}')
        a(f's_lshr_b32 s{self.S_I}, s2, 3')
        vt = R.alloc('v', 'pf', 2)
        a(f's_getpc_b64 s[{T}:{T+1}]')
        a.label('L_pc0')
        a(f's_lshl_b32 s64, s{self.S_I}, 2'); a(f's_add_u32 s64, s64, s{self.S_W}'); a(f's_lshl_b32 s64, s64, PF_SHIFT')
        a(f'v_lshlrev_b32 v{vt}, PF_LSH, v{self.vLANE}'); a(f'v_add_u32 v{vt}, s64, v{vt}')
        a(f'v_min_u32 v{vt}, L_end-L_pc0, v{vt}')
        a(f'global_load_dword v{vt+1}, v{vt}, s[{T}:{T+1}]', vm='pf')
        self.stamp('start')
        a(f's_and_b32 s{T}, s{self.S_X}, 3'); a(f's_lshl_b32 s{T}, s{T}, 2'); a(f's_and_b32 s{T+1}, s{self.S_I}, 3')
        a(f's_add_u32 s{self.S_MT}, s{T}, s{T+1}')
        a(f's_lshr_b32 s{T}, s{self.S_X}, 2'); a(f's_lshl_b32 s{T}, s{T}, 3'); a(f's_lshr_b32 s{T+1}, s{self.S_I}, 2')
        a(f's_add_u32 s{self.S_NT}, s{T}, s{T+1}')

    def kv_loads(self):
        a, R, T, P = self.a, self.R, self.T, self.S_PTR
        vb = R.alloc('v', 'kaddr', 5, align=1); t0 = R.alloc('v', 't0', 1); t1 = R.alloc('v', 't1', 1)
        a(f'v_and_b32 v{t0}, 7, v0'); a(f'v_lshlrev_b32 v{t0}, 4, v{t0}')
        a(f'v_lshrrev_b32 v{t1}, 3, v0'); a(f'v_lshlrev_b32 v{t1}, 11, v{t1}')
        a(f's_lshl_b32 s{T}, s{self.S_I}, 16'); a(f's_lshl_b32 s{T+1}, s{self.S_X}, 7')
        a(f's_add_u32 s{T}, s{T}, s{T+1}'); a(f's_sub_u32 s{T}, s{T}, 3072')
        a(f'v_add3_u32 v{vb}, v{t0}, v{t1}, s{T}')
        for j in range(1, 5): a(f'v_add_u32 v{vb+j}, {1024*j}, v{vb}')
        a(f'v_lshlrev_b32 v{t0}, 4, v{self.vLANE}'); a(f's_lshl_b32 s{T}, s{self.S_X}, 9')
        self.KR = R.alloc('v', 'KR', 20); self.VR = R.alloc('v', 'VR', 8); self.SHR = R.alloc('v', 'SHR', 4)
        a('s_waitcnt lgkmcnt(0)')
        self.stamp('karg')
        self.srd(self.SRD_K, P + 2, 2048 * 1024)
        for j in range(5):
            a(f'buffer_load_dwordx4 {rr("v", self.KR+4*j, 4)}, v{vb+j}, {self.D(self.SRD_K)}, 0 offen', vm='kv')
        self.srd(self.SRD_V, P + 4, 2048 * 1024)
        for j in range(2):
            a(f'buffer_load_dwordx4 {rr("v", self.VR+4*j, 4)}, v{vb+3+j}, {self.D(self.SRD_V)}, 0 offen', vm='kv')
        self.srd(self.SRD_SH, P + 6, 4096)
        a(f'buffer_load_dwordx4 {rr("v", self.SHR, 4)}, v{t0}, {self.D(self.SRD_SH)}, s{T} offen', vm='kv')
        R.release('kaddr', 't0', 't1')
        self.srd(self.SRD_W2, P + 16, 1792 * 1024)
        self.srd(self.SRD_Q, P + 0, 2048 * 1024)
        self.srd(self.SRD_W1, P + 14, 512 * 3584)
        wsb = self.o('ws_base', 0)
        if wsb:
            a(f's_mov_b32 s64, {wsb << 20}')
            self.srd(self.SRD_WS, P + 22, WS_SIZE, add=64)
        else:
            self.srd(self.SRD_WS, P + 22, WS_SIZE)
        self.srd(self.SRD_OUT, P + 18, 2048 * 1024)
        a(f's_lshl_b32 s{T}, s{self.S_X}, 5'); a(f's_add_u32 s{T}, s{T}, s{self.S_I}'); a(f's_lshl_b32 s{T+1}, s{T}, 2')
        a(f's_load_dword s95, s[{P+10}:{P+11}], s{T+1}')
        a(f's_lshl_b32 s{T}, s{T}, 13')
        self.srd(self.SRD_SK, P + 8, 8192, add=T)

    def w2_task_loads(self):
        a, R, T = self.a, self.R, self.T
        t0 = R.alloc('v', 't0', 1); t1 = R.alloc('v', 't1', 1)
        SIG, TA, TB = 64, 65, 66
        a(f's_lshl_b32 s{SIG}, s{self.S_W}, 5'); a(f's_add_u32 s{SIG}, s{SIG}, s{self.S_I}')
        a(f's_cmp_lt_u32 s{SIG}, 56'); a('s_cselect_b64 s[92:93], -1, 0'); a(f's_cselect_b32 s94, s{SIG}, 0')
        a(f's_mul_hi_u32 s{T}, s94, 0x24924925')
        a(f's_mul_i32 s{T+1}, s{T}, 7'); a(f's_sub_u32 s{T+1}, s94, s{T+1}')
        a(f's_mul_i32 s{T}, s{T}, 14')
        a(f's_lshl_b32 s{TA}, s{T+1}, 1')
        a(f's_cmp_ge_u32 s{T+1}, 3'); a(f's_cselect_b32 s{TB}, 1, 0'); a(f's_add_u32 s{TA}, s{TA}, s{TB}')
        a(f's_cmp_eq_u32 s{T+1}, 6'); a(f's_cselect_b32 s{TA}, 6, s{TA}'); a(f's_cselect_b32 s{TB}, 7, 1')
        a(f's_add_u32 s{TA}, s{TA}, s{T}'); a(f's_add_u32 s{TB}, s{TB}, s{TA}')
        a(f's_lshl_b32 s{TA}, s{TA}, 14'); a(f's_lshl_b32 s{TB}, s{TB}, 14')
        a(f's_lshl_b32 s{T}, s{self.S_X}, 7'); a(f's_add_u32 s{TA}, s{TA}, s{T}'); a(f's_add_u32 s{TB}, s{TB}, s{T}')
        a(f'v_lshrrev_b32 v{t0}, 4, v{self.vLANE}'); a(f'v_lshlrev_b32 v{t0}, 12, v{t0}')
        a(f'v_and_b32 v{t1}, 15, v{self.vLANE}'); a(f'v_lshl_add_u32 v{t0}, v{t1}, 3, v{t0}')
        self.W2R = R.alloc('v', 'W2R', 16)
        a('s_mov_b64 exec, s[92:93]')
        for j in range(8):
            so = TA if j < 4 else TB
            a(f'buffer_load_dwordx2 {rr("v", self.W2R+2*j, 2)}, v{t0}, {self.D(self.SRD_W2)}, s{so} offen offset:{(j&3)*1024}', vm='w2')
        a('s_mov_b64 exec, -1')
        R.release('t0', 't1')

    def hk_setup(self):
        a, R = self.a, self.R
        self.HR = R.alloc('v', 'HR', 16); self.HX = R.alloc('v', 'HX', 2); self.vHK = R.alloc('v', 'vHK', 3, align=1)
        v = self.vHK; L = self.vLANE
        a(f'v_lshlrev_b32 v{v}, 4, v0'); a(f'v_add_u32 v{v+1}, 4096, v{v}')
        t = R.alloc('v', 'hkt', 1)
        a(f'v_and_b32 v{v+2}, 3, v{L}'); a(f'v_lshrrev_b32 v{t}, 2, v{L}'); a(f'v_lshlrev_b32 v{t}, 12, v{t}')
        a(f'v_cmp_eq_u32 vcc, 3, v{v+2}'); a(f'v_mov_b32 v{v+2}, {OOB}')
        a(f'v_cndmask_b32 v{v+2}, v{v+2}, v{t}, vcc')
        R.release('hkt')
    def hk_fill(self):
        a = self.a; v = self.vHK; S = self.D(self.SRD_SK)
        L = []
        for ch in range(2):
            L.append(lambda ch=ch: a(f'buffer_load_dwordx4 {rr("v", self.HR+8*ch, 4)}, v{v+ch}, {S}, 0 offen', vm='hk'))
            L.append(lambda ch=ch: a(f'buffer_load_dwordx2 {rr("v", self.HR+8*ch+4, 2)}, v{v+ch}, {S}, 0 offen offset:16', vm='hk'))
        L.append(lambda: a(f'buffer_load_dwordx2 {rr("v", self.HX, 2)}, v{v+2}, {S}, 0 offen', vm='hk'))
        return L

    def g1_setup(self):
        a, R, T = self.a, self.R, self.T
        L = self.vLANE
        t0 = R.alloc('v', 't0', 1); t1 = R.alloc('v', 't1', 1); t2 = R.alloc('v', 't2', 1)
        self.vQ = R.alloc('v', 'vQ', 1)
        a(f'v_lshrrev_b32 v{t0}, 3, v{L}'); a(f'v_and_b32 v{t1}, 7, v{L}'); a(f'v_xor_b32 v{t1}, v{t1}, v{t0}')
        a(f'v_lshlrev_b32 v{t2}, 10, v{t0}'); a(f'v_lshl_add_u32 v{self.vQ}, v{t1}, 4, v{t2}')
        a(f's_lshl_b32 s{T}, s{self.S_MT}, 17'); a(f's_lshl_b32 s{T+1}, s{self.S_W}, 15'); a(f's_add_u32 s76, s{T}, s{T+1}')
        for j in range(1, 4): a(f's_add_u32 s{76+j}, s76, {8192*j}')
        self.vW = R.alloc('v', 'vW', 4, align=1)
        a(f's_mov_b32 s{T}, 0x12492493'); a(f's_lshl_b32 s{T+1}, s{self.S_W}, 6')
        for j in range(4):
            a(f'v_add_u32 v{t0}, s{T+1}, v{L}')
            if j: a(f'v_add_u32 v{t0}, {256*j}, v{t0}')
            a(f'v_mul_hi_u32 v{t1}, v{t0}, s{T}')
            a(f'v_mul_u32_u24 v{t2}, 14, v{t1}'); a(f'v_sub_u32 v{t0}, v{t0}, v{t2}')
            a(f'v_bfe_u32 v{t2}, v{t1}, 3, 1'); a(f'v_lshlrev_b32 v{t2}, 2, v{t2}'); a(f'v_xor_b32 v{t1}, v{t1}, v{t2}')
            a(f'v_mul_u32_u24 v{t1}, 3584, v{t1}'); a(f'v_lshl_add_u32 v{self.vW+j}, v{t0}, 4, v{t1}')
        a(f's_mul_i32 s80, s{self.S_NT}, 224')
        a(f's_lshl_b32 s81, s{self.S_W}, 10')
        a(f's_lshl_b32 s64, s{self.S_W}, 12')
        a(f's_mov_b32 s66, s64')
        a(f's_cmp_lt_u32 s{self.S_W}, 2'); a(f's_cselect_b64 s[{self.S_M3}:{self.S_M3+1}], -1, 0')
        self.vBR = R.alloc('v', 'vBR', 4, align=1)
        a(f'v_and_b32 v{t0}, 7, v{L}'); a(f'v_lshrrev_b32 v{t1}, 4, v{L}')
        a(f'v_xor_b32 v{t1}, v{t1}, v{t0}'); a(f'v_lshlrev_b32 v{t1}, 4, v{t1}'); a(f'v_lshl_add_u32 v{t1}, v{t0}, 7, v{t1}')
        a(f'v_bfe_u32 v{t2}, v{L}, 3, 1'); a(f'v_lshl_add_u32 v{t1}, v{t2}, 10, v{t1}')
        a(f'v_add_u32 v{self.vBR}, s66, v{t1}'); a(f'v_xor_b32 v{self.vBR+1}, 64, v{self.vBR}')
        a(f'v_add_u32 v{self.vBR+2}, {2*SLOT}, v{self.vBR}'); a(f'v_add_u32 v{self.vBR+3}, {2*SLOT}, v{self.vBR+1}')
        self.vA = R.alloc('v', 'vA', 4, align=1); self.vAC = R.alloc('v', 'vAC', 4, align=1)
        a(f'v_lshrrev_b32 v{t0}, 4, v{L}'); a(f'v_bfe_u32 v{t1}, v{L}, 2, 2')
        a(f'v_and_b32 v{t2}, 1, v{t0}'); a(f'v_lshlrev_b32 v{t2}, 2, v{t2}'); a(f'v_xor_b32 v{t1}, v{t1}, v{t2}')
        a(f'v_lshl_add_u32 v{t1}, v{t0}, 3, v{t1}'); a(f'v_xor_b32 v{t2}, 4, v{t1}')
        a(f'v_and_b32 v{t0}, 3, v{L}'); a(f'v_lshlrev_b32 v{t0}, 3, v{t0}'); a(f'v_add_u32 v{t0}, 16384, v{t0}')
        a(f'v_mul_u32_u24 v{t1}, 224, v{t1}'); a(f'v_add_u32 v{self.vA}, v{t1}, v{t0}')
        a(f'v_mul_u32_u24 v{t2}, 224, v{t2}'); a(f'v_add_u32 v{self.vA+1}, v{t2}, v{t0}')
        a(f'v_add_u32 v{self.vA+2}, {2*SLOT}, v{self.vA}'); a(f'v_add_u32 v{self.vA+3}, {2*SLOT}, v{self.vA+1}')
        a(f's_lshl_b32 s{T}, s{self.S_W}, 5')
        for j in range(4): a(f'v_add_u32 v{self.vAC+j}, s{T}, v{self.vA+j}')
        R.release('t0', 't1', 't2')

    def slot_fill(self, kp):
        a = self.a; base = (kp & 3) * SLOT
        L = []
        def q(j):
            a(f's_add_u32 m0, s66, {base + j*1024}'); a(f's_nop 0')
            a(f'buffer_load_dwordx4 v{self.vQ}, {self.D(self.SRD_Q)}, s{76+j} offen lds', vm=f'kp{kp}')
            a(f's_add_u32 s{76+j}, s{76+j}, 128')
        def w(j):
            a(f's_add_u32 m0, s81, {base + 16384 + j*4096}')
            if j == 3: a(f's_mov_b64 exec, s[{self.S_M3}:{self.S_M3+1}]')
            else: a('s_nop 0')
            a(f'buffer_load_dwordx4 v{self.vW+j}, {self.D(self.SRD_W1)}, s80 offen lds', vm=f'kp{kp}')
            if j == 3:
                a('s_mov_b64 exec, -1'); a(f's_add_u32 s80, s80, {64*3584}')
        for j in range(4):
            L.append(lambda j=j: w(j)); L.append(lambda j=j: q(j))
        return L

    def p0_compute(self):
        a, R, T, v = self.a, self.R, self.T, self.v
        L = self.vLANE
        t0 = R.alloc('v', 't0', 1); t1 = R.alloc('v', 't1', 1)
        WR = R.alloc('v', 'WR', 16); vKS = R.alloc('v', 'vKS', 1); vS = R.alloc('v', 'vS', 2)
        a(f's_lshl_b32 s{T}, s{self.S_W}, 9'); a(f's_add_u32 s{T}, s{T}, {L_SHK}')
        a(f'v_lshlrev_b32 v{vS}, 4, v{L}'); a(f'v_add_u32 v{vS}, s{T}, v{vS}')
        a(f'v_and_b32 v{vS+1}, 7, v{L}'); a(f'v_lshlrev_b32 v{vS+1}, 6, v{vS+1}'); a(f'v_add_u32 v{vS+1}, s{T}, v{vS+1}')
        a(f'v_and_b32 v{t0}, 7, v0'); a(f'v_lshrrev_b32 v{t1}, 3, v0'); a(f'v_sub_u32 v{t1}, 31, v{t1}')
        a(f'v_lshlrev_b32 v{vKS}, 2, v{t0}'); a(f'v_xor_b32 v{t1}, v{t1}, v{vKS}'); a(f'v_lshlrev_b32 v{t1}, 2, v{t1}')
        a(f'v_lshl_add_u32 v{t1}, v{t0}, 10, v{t1}'); a(f'v_add_u32 v{vKS}, {L_KVS}, v{t1}')
        a(f'v_cmp_gt_u32 vcc, 32, v{L}')
        a.wait_vm('kv')
        self.stamp('kv_landed')
        a('s_and_saveexec_b64 s[82:83], vcc')
        a(f'ds_write_b128 v{vS}, {rr("v", self.SHR, 4)}', lg='x')
        a('s_mov_b64 exec, s[82:83]')
        for j in range(4): a(f'ds_read_b128 {rr("v", WR+4*j, 4)}, v{vS+1} offset:{16*j}', lg='wr')
        KP = R.alloc('v', 'KP', 40); WP = R.alloc('v', 'WP', 8); VP = R.alloc('v', 'VP', 16); RS = R.alloc('v', 'RS', 4); OD = R.alloc('v', 'OD', 2)
        for c in range(4):
            for j in range(5):
                v(f'v_lshlrev_b32 v{KP+10*c+2*j}, 16, v{self.KR+4*j+c}'); v(f'v_and_b32 v{KP+10*c+2*j+1}, 0xffff0000, v{self.KR+4*j+c}')
            for j in range(2):
                v(f'v_lshlrev_b32 v{VP+4*c+2*j}, 16, v{self.VR+4*j+c}'); v(f'v_and_b32 v{VP+4*c+2*j+1}, 0xffff0000, v{self.VR+4*j+c}')
            if c == 0: a.wait_lg('wr')
            for e in range(2):
                d0, d1 = WR + 4 * c + 2 * e, WR + 4 * c + 2 * e + 1
                v(f'v_lshlrev_b32 v{WP+0+e}, 16, v{d0}'); v(f'v_and_b32 v{WP+2+e}, 0xffff0000, v{d0}')
                v(f'v_lshlrev_b32 v{WP+4+e}, 16, v{d1}'); v(f'v_and_b32 v{WP+6+e}, 0xffff0000, v{d1}')
            kp_, vp_ = KP + 10 * c, VP + 4 * c
            for o in range(2):
                r = rr('v', RS + 2 * o, 2)
                v(f'v_pk_mul_f32 {r}, {rr("v", WP+6, 2)}, {rr("v", kp_+2*(o+0), 2)}')
            for tt, wp in ((1, 4), (2, 2), (3, 0)):
                for o in range(2):
                    r = rr('v', RS + 2 * o, 2)
                    v(f'v_pk_fma_f32 {r}, {rr("v", WP+wp, 2)}, {rr("v", kp_+2*(o+tt), 2)}, {r}')
            for o in range(2):
                r = rr('v', RS + 2 * o, 2)
                v(f'v_pk_mul_f32 {r}, {r}, {rr("v", vp_+2*o, 2)}')
            for e in range(2):
                v(f'v_cvt_pk_bf16_f32 v{OD+e}, v{RS+2+e}, v{RS+e}')
            for e in range(2):
                a(f'ds_write_b32 v{vKS}, v{OD+e} offset:{(2*c+e)*128}', lg='kvs')
        R.release('KP', 'WP', 'VP', 'RS', 'OD', 'WR', 'KR', 'VR', 'SHR', 'vKS', 'vS')
        self.flush_fill()
        KO = R.alloc('v', 'KO', 8); vr = R.alloc('v', 'vr', 2)
        a(f'v_lshrrev_b32 v{t0}, 3, v0'); a(f'v_and_b32 v{t1}, 7, v0')
        a(f'v_lshrrev_b32 v{vr}, 3, v{t0}'); a(f'v_xor_b32 v{vr}, v{vr}, v{t1}'); a(f'v_lshlrev_b32 v{vr}, 4, v{vr}')
        a(f'v_lshl_add_u32 v{vr}, v{t0}, 7, v{vr}'); a(f'v_add_u32 v{vr}, {L_KVS}, v{vr}')
        a(f'v_xor_b32 v{vr+1}, 64, v{vr}')
        a(f'v_lshlrev_b32 v{t0}, 12, v{t0}'); a(f'v_lshl_add_u32 v{t0}, v{t1}, 4, v{t0}')
        a(f's_lshl_b32 s{T}, s{self.S_X}, 18'); a(f's_lshl_b32 s{T+1}, s{self.S_I}, 7'); a(f's_sub_u32 s{T}, s{T}, s{T+1}')
        a(f's_add_u32 s82, s{T}, {WS_KVT + 3968}'); a(f's_add_u32 s83, s82, {32*4096}')
        a('s_waitcnt lgkmcnt(0)')
        a('s_barrier')
        self.stamp('kv_computed')
        a(f'ds_read_b128 {rr("v", KO, 4)}, v{vr}', lg='ko'); a(f'ds_read_b128 {rr("v", KO+4, 4)}, v{vr+1} offset:4096', lg='ko')
        WO = R.alloc('v', 'WO', 16)
        a('s_mov_b32 s84, 0x05040100'); a('s_mov_b32 s85, 0x07060302')
        a.wait_vm('w2')
        for dl in range(4):
            for p in range(4):
                lo, hi = self.W2R + 2 * (2 * p) + (dl >> 1), self.W2R + 2 * (2 * p + 1) + (dl >> 1)
                a(f'v_perm_b32 v{WO+4*dl+p}, v{hi}, v{lo}, s{84 + (dl & 1)}')
            if dl == 0:
                a('s_waitcnt lgkmcnt(0)')
                a(f'buffer_store_dwordx4 {rr("v", KO, 4)}, v{t0}, {self.D(self.SRD_WS)}, s82 offen {self.o("p0_sc", "sc1")}', vm='p0st')
                a(f'buffer_store_dwordx4 {rr("v", KO+4, 4)}, v{t0}, {self.D(self.SRD_WS)}, s83 offen {self.o("p0_sc", "sc1")}', vm='p0st')
        a(f's_mul_i32 s{T}, s{self.S_X}, {TILE_B}'); a(f's_lshl_b32 s{T+1}, s94, 12'); a(f's_add_u32 s{T}, s{T}, s{T+1}')
        a(f's_add_u32 s{T}, s{T}, {WS_W2F}')
        a(f'v_lshlrev_b32 v{t1}, 4, v{L}')
        a('s_mov_b64 exec, s[92:93]')
        for dl in range(4):
            a(f'buffer_store_dwordx4 {rr("v", WO+4*dl, 4)}, v{t1}, {self.D(self.SRD_WS)}, s{T} offen offset:{dl*1024} {self.o("p0_sc", "sc1")}', vm='p0st')
        a('s_mov_b64 exec, -1')
        R.release('W2R', 'vr')
        self.late_release = ['KO', 'WO', 't0', 't1']
        self.stamp('p0_done')

    def cnt_addr(self, dst, kind, src):
        a = self.a
        base = {'A': 0, 'H': 2, 'Y': 6}[kind]
        a(f's_and_b32 s{dst}, s{src}, 3'); a(f's_lshl_b32 s{dst}, s{dst}, 4'); a(f's_lshr_b32 s67, s{src}, 2')
        a(f's_add_u32 s{dst}, s{dst}, s67'); a(f's_add_u32 s{dst}, s{dst}, {base}'); a(f's_lshl_b32 s{dst}, s{dst}, 2')

    def signal(self, kind, src):
        a, R = self.a, self.R
        self.cnt_addr(75, kind, src)
        t = R.alloc('v', 'sig', 2)
        a(f'v_mov_b32 v{t}, s75'); a(f'v_mov_b32 v{t+1}, 1')
        a(f's_cmp_eq_u32 s{self.S_W}, 0'); a('s_cselect_b64 exec, 1, 0')
        a(f'global_atomic_add v{t}, v{t+1}, s[{self.S_DBG}:{self.S_DBG+1}] sc1', vm='sig')
        a('s_mov_b64 exec, -1')
        R.release('sig')

    def poll_issue(self, name, items):
        a, R = self.a, self.R
        t = R.alloc('v', 'poll_' + name, 2)
        for j, (kind, src) in enumerate(items):
            self.cnt_addr(75, kind, src)
            if j == 0: a(f'v_mov_b32 v{t}, s75')
            else: a(f'v_writelane_b32 v{t}, s75, {j}')
        mask = (1 << len(items)) - 1
        setattr(self, 'poll_' + name, (t, mask))
        a(f's_cmp_eq_u32 s{self.S_W}, 0'); a(f's_cselect_b64 exec, {mask}, 0')
        a(f'global_load_dword v{t+1}, v{t}, s[{self.S_DBG}:{self.S_DBG+1}] sc1', vm='poll_' + name)
        a('s_mov_b64 exec, -1')

    def poll_check(self, name, target):
        a, R = self.a, self.R
        t, mask = getattr(self, 'poll_' + name)
        a.wait_vm('poll_' + name)
        a(f's_cmp_lg_u32 s{self.S_W}, 0'); a(f's_cbranch_scc1 L_pk_{name}')
        a(f's_mov_b32 s67, 0')
        a.label(f'L_pl_{name}')
        a.raw(f'    v_cmp_le_u32 vcc, {target}, v{t+1}')
        a.raw('    s_nop 1')
        a.raw(f'    s_and_b32 s75, vcc_lo, {mask}')
        a.raw(f'    s_cmp_eq_u32 s75, {mask}')
        a.raw(f'    s_cbranch_scc1 L_pk_{name}')
        a.raw('    s_sleep 4')
        a.raw(f'    s_mov_b64 exec, {mask}')
        a.raw(f'    global_load_dword v{t+1}, v{t}, s[{self.S_DBG}:{self.S_DBG+1}] sc1')
        a.raw('    s_mov_b64 exec, -1')
        a.raw('    s_waitcnt vmcnt(0)')
        a.raw('    s_add_u32 s67, s67, 1')
        a.raw('    s_cmp_lt_u32 s67, 0x40000')
        a.raw(f'    s_cbranch_scc1 L_pl_{name}')
        a.label(f'L_pk_{name}')
        R.release('poll_' + name)

    def g1_main(self):
        a, R, T = self.a, self.R, self.T
        self.ACC = R.alloc('v', 'ACC', 56); self.SX = R.alloc('v', 'SX', 8); self.GR = R.alloc('v', 'GR', 8); self.CL = R.alloc('v', 'CL', 8)
        AF = R.alloc('v', 'AF', 56); AC = R.alloc('v', 'AC', 16); BF = R.alloc('v', 'BF', 16); ON = R.alloc('a', 'ONES', 4)
        t0 = R.alloc('v', 'tone', 1)
        a(f'v_mov_b32 v{t0}, 0x3f803f80')
        for j in range(4): a(f'v_accvgpr_write_b32 a{ON+j}, v{t0}')
        R.release('tone')
        def af(b, t): return AF + b * 28 + t * 4
        def ac(b, c): return AC + b * 8 + c * 4
        def bf(b, Tt): return BF + b * 8 + Tt * 4
        def reads(ks):
            b = ks & 1; kp = ks >> 1; p = ks & 1; sl = kp & 3
            hi = 2 if sl >= 2 else 0; off = (sl & 1) * SLOT
            L = [f'ds_read_b128 {rr("v", bf(b, Tt), 4)}, v{self.vBR+hi+p} offset:{off + Tt*2048}' for Tt in range(2)]
            for t in range(7):
                for hh in range(2):
                    L.append(f'ds_read_b64_tr_b16 {rr("v", af(b, t)+2*hh, 2)}, v{self.vA+hi+hh} offset:{off + p*7168 + t*32}')
            for c in range(2):
                for hh in range(2):
                    L.append(f'ds_read_b64_tr_b16 {rr("v", ac(b, c)+2*hh, 2)}, v{self.vAC+hi+hh} offset:{off + p*7168 + c*128}')
            return L
        s0 = self.o('g1_vm0', 3)
        vq = [(s0, f) for f in self.slot_fill(3)] if self.o('pre_slots', 4) == 3 else []
        vq += [(s0, f) for f in self.slot_fill(4)] + [(s0, f) for f in self.slot_fill(5)]
        vq += [(5, f) for f in self.slot_fill(6)] + [(7, f) for f in self.slot_fill(7)] + [(7, f) for f in self.hk_fill()]
        self.w2f = self.w2_fill()
        w2_step = self.o('w2_step', 11)
        n_g1 = self.o('w2_in_g1', 22)
        vq += [(w2_step, f) for f in self.w2f[:n_g1]]
        self.w2f = self.w2f[n_g1:]
        per_step = self.o('g1_vm', 5)
        a.wait_vm('kp0')
        a('s_barrier')
        self.stamp('g1_first')
        for x in reads(0): a(x, lg='x')
        a('s_waitcnt lgkmcnt(0)')
        for ks in range(16):
            ab = ks & 1
            if ks & 1 and ks + 1 < 16:
                j = (ks + 1) >> 1
                a.wait_vm(f'kp{j}') if j != 3 else a.wait_vm(f'kp{j}', 'p0st')
                if ks == w2_step: self.poll_check('A', 32)
                a('s_barrier')
                if j == 3:
                    self.signal('A', self.S_X)
                    R.release(*self.late_release)
            if ks == self.o('pollA_step', 9):
                self.poll_issue('A', [('A', self.S_X), ('A', self.S_DT)])
            rd = reads(ks + 1) if ks + 1 < 16 else []
            first = ks == 0
            mf = []
            for Tt in range(2):
                d = rr('v', self.GR + Tt * 4, 4)
                mf.append(f'v_mfma_f32_16x16x32_bf16 {d}, {rr("v", bf(ab, Tt), 4)}, {rr("v", bf(ab, Tt), 4)}, {"0" if first else d}')
            for t in range(7):
                for Tt in range(2):
                    d = rr('v', self.ACC + (t * 2 + Tt) * 4, 4)
                    mf.append(f'v_mfma_f32_16x16x32_bf16 {d}, {rr("v", af(ab, t), 4)}, {rr("v", bf(ab, Tt), 4)}, {"0" if first else d}')
            for Tt in range(2):
                d = rr('v', self.SX + Tt * 4, 4)
                mf.append(f'v_mfma_f32_16x16x32_bf16 {d}, {rr("a", ON, 4)}, {rr("v", bf(ab, Tt), 4)}, {"0" if first else d}')
            for c in range(2):
                d = rr('v', self.CL + c * 4, 4)
                mf.append(f'v_mfma_f32_16x16x32_bf16 {d}, {rr("v", ac(ab, c), 4)}, {rr("a", ON, 4)}, {"0" if first else d}')
            nv = 0
            lead = self.o('g1_lead', 2)
            ri = 0
            for j, m in enumerate(mf):
                a(m)
                k = 2 if j < lead else 1
                while k > 0 and ri < len(rd):
                    a(rd[ri], lg='x'); ri += 1; k -= 1
                if j % 4 == 1 and nv < per_step and vq and vq[0][0] <= ks:
                    vq.pop(0)[1](); nv += 1
            while ri < len(rd): a(rd[ri], lg='x'); ri += 1
            a('s_waitcnt lgkmcnt(0)')
            if self.o('stamp_g1', 0): self.stamp(f'g1s{ks}')
        for _, f in vq: f()
        R.release('AF', 'AC', 'BF', 'ONES', 'vQ', 'vW', 'vBR', 'vA', 'vAC', 'vHK')
        self.stamp('g1_done')

    def hc_fill(self):
        a, R = self.a, self.R
        O = R.alloc('v', 'O', 12); vH = R.alloc('v', 'vH', 2)
        L = self.vLANE
        out = []
        def addr():
            a(f'v_lshlrev_b32 v{vH}, 4, v0'); a(f'v_add_u32 v{vH}, {L_HC + 64}, v{vH}')
            a(f'v_and_b32 v{O}, 3, v{L}'); a(f'v_lshrrev_b32 v{O+1}, 2, v{L}')
            a(f'v_mul_u32_u24 v{O+1}, 16640, v{O+1}'); a(f'v_lshl_add_u32 v{O}, v{O}, 4, v{O+1}'); a(f'v_add_u32 v{vH+1}, {L_HC}, v{O}')
            a.wait_vm('hk')
        out.append(addr)
        def copies(d, base, va):
            def c3(): a(f'ds_write_b128 v{va}, {rr("v", d+2, 4)} offset:{base + 3*4160}', lg='hc')
            def c0():
                for j in range(4): a(f'v_alignbit_b32 v{O+j}, v{d+j+1}, v{d+j}, 16')
                a(f'ds_write_b128 v{va}, {rr("v", O, 4)} offset:{base}', lg='hc')
            def c2():
                for j in range(4): a(f'v_alignbit_b32 v{O+4+j}, v{d+j+2}, v{d+j+1}, 16')
                a(f'ds_write_b128 v{va}, {rr("v", O+4, 4)} offset:{base + 2*4160}', lg='hc')
            def c1():
                for j in range(4): a(f'v_mov_b32 v{O+8+j}, v{d+j+1}')
                a(f'ds_write_b128 v{va}, {rr("v", O+8, 4)} offset:{base + 4160}', lg='hc')
            return [c3, c0, c2, c1]
        for ch in range(2): out += copies(self.HR + 8 * ch, ch * 16640, vH)
        def extra():
            d = self.HR
            a('s_waitcnt lgkmcnt(0)')
            a(f'v_cmp_gt_u32 vcc, 8, v0'); a('s_and_saveexec_b64 s[82:83], vcc')
            a('s_cbranch_execz L_hx_skip')
            for j in range(4): a(f'v_mov_b32 v{d+j}, 0')
            a(f'v_mov_b32 v{d+4}, v{self.HX}'); a(f'v_mov_b32 v{d+5}, v{self.HX+1}')
            for f in copies(d, 0, vH + 1): f()
            a.label('L_hx_skip')
            a('s_mov_b64 exec, s[82:83]')
            a('s_waitcnt lgkmcnt(0)')
            R.release('O', 'vH', 'HR', 'HX')
        out.append(extra)
        return out

    def conv_zero(self):
        a, R = self.a, self.R
        z = R.alloc('v', 'z', 4); t = R.alloc('v', 'zt', 1)
        for j in range(4): a(f'v_mov_b32 v{z+j}, 0')
        a(f'v_lshlrev_b32 v{t}, 4, v0'); a(f'v_add_u32 v{t}, {L_UR + 5120}, v{t}')
        a(f'v_cmp_gt_u32 vcc, 155, v0'); a('s_and_saveexec_b64 s[82:83], vcc')
        a(f'ds_write_b128 v{t}, {rr("v", z, 4)}', lg='x'); a(f'ds_write_b128 v{t}, {rr("v", z, 4)} offset:7600', lg='x')
        a('s_mov_b64 exec, s[82:83]')
        self.zrel = ['z', 'zt']

    def ur_loads(self):
        a, R, T = self.a, self.R, self.T
        self.URR = R.alloc('v', 'URR', 8); t = R.alloc('v', 'urt', 1)
        a(f's_lshl_b32 s{T}, s{self.S_X}, 18'); a(f's_lshl_b32 s{T+1}, s{self.S_I}, 13'); a(f's_add_u32 s{T}, s{T}, s{T+1}')
        a(f's_add_u32 s{T+1}, s{T}, 4096')
        a(f'v_lshlrev_b32 v{t}, 4, v0')
        a(f'buffer_load_dwordx4 {rr("v", self.URR, 4)}, v{t}, {self.D(self.SRD_WS)}, s{T} offen sc1', vm='ur')
        a(f'buffer_load_dwordx4 {rr("v", self.URR+4, 4)}, v{t}, {self.D(self.SRD_WS)}, s{T+1} offen sc1', vm='ur')
        R.release('urt')

    def g1_epilogue(self):
        a, R, T, v = self.a, self.R, self.T, self.v
        L = self.vLANE
        t = R.alloc('v', 't', 8)
        a(f'v_lshrrev_b32 v{t}, 4, v{L}'); a(f'v_lshlrev_b32 v{t}, 4, v{t}')
        a(f's_lshl_b32 s{T}, s{self.S_W}, 6'); a(f's_add_u32 s{T}, s{T}, {L_COL}')
        a(f'v_add_u32 v{t+1}, s{T}, v{t}')
        a(f'v_and_b32 v{t+2}, 15, v{L}'); a(f'v_cmp_eq_u32 vcc, 0, v{t+2}')
        a(f'v_and_b32 v{t+3}, 3, v{L}')
        a(f'v_cmp_eq_u32 s[82:83], 1, v{t+3}'); a(f'v_cmp_eq_u32 s[84:85], 2, v{t+3}'); a(f'v_cmp_eq_u32 s[86:87], 3, v{t+3}')
        a(f'v_lshrrev_b32 v{t+4}, 2, v{t+2}'); a(f'v_lshl_add_u32 v{t+4}, v{t+4}, 4, v{t+2}'); a(f'v_lshlrev_b32 v{t+4}, 2, v{t+4}')
        for Tt in range(2):
            g = self.GR + 4 * Tt
            a(f'v_cndmask_b32 v{t+5}, v{g}, v{g+1}, s[82:83]'); a(f'v_cndmask_b32 v{t+5}, v{t+5}, v{g+2}, s[84:85]'); a(f'v_cndmask_b32 v{t+5}, v{t+5}, v{g+3}, s[86:87]')
            a(f'ds_bpermute_b32 v{t+6+Tt}, v{t+4}, v{t+5}', lg='bp')
        a('s_mov_b64 exec, vcc')
        a(f'ds_write_b128 v{t+1}, {rr("v", self.CL, 4)}', lg='x')
        a(f'ds_write_b128 v{t+1}, {rr("v", self.CL+4, 4)} offset:256', lg='x')
        a('s_mov_b64 exec, -1')
        self.ur_loads()
        for f in self.w2f[:self.o('w2_in_e1', 4)]: f()
        self.w2f = self.w2f[self.o('w2_in_e1', 4):]
        a('s_waitcnt lgkmcnt(0)')
        a('s_barrier')
        self.stamp('e1_bar')
        CB = R.alloc('v', 'CB', 28)
        a(f'v_add_u32 v{t+1}, {L_COL}, v{t}')
        for tt in range(7): a(f'ds_read_b128 {rr("v", CB+4*tt, 4)}, v{t+1} offset:{tt*64}', lg='cb')
        self.conv_zero()
        NM = R.alloc('v', 'NM', 4); K1 = R.alloc('v', 'K1', 4); LL = R.alloc('v', 'LL', 2); RI = R.alloc('v', 'RI', 2)
        a('s_mov_b32 s82, 0x3b000000'); a('s_mov_b32 s83, 0x3727c5ac'); a('s_mov_b32 s85, 0xbfb8aa3b')
        a(f'v_mov_b32 v{LL}, s85'); a(f'v_mov_b32 v{LL+1}, s85')
        for Tt in range(2):
            mean, ex2, tmp = t, t + 1, t + 2
            a(f'v_mul_f32 v{mean}, s82, v{self.SX+4*Tt}'); a(f'v_mul_f32 v{ex2}, s82, v{t+6+Tt}')
            a(f'v_fma_f32 v{ex2}, -v{mean}, v{mean}, v{ex2}'); a(f'v_max_f32 v{ex2}, 0, v{ex2}')
            a(f'v_cvt_pk_bf16_f32 v{tmp}, v{mean}, v{ex2}')
            a(f'v_lshlrev_b32 v{mean}, 16, v{tmp}'); a(f'v_and_b32 v{ex2}, 0xffff0000, v{tmp}')
            a(f'v_add_f32 v{ex2}, s83, v{ex2}'); a(f'v_cvt_pk_bf16_f32 v{tmp}, v{ex2}, v{ex2}'); a(f'v_lshlrev_b32 v{ex2}, 16, v{tmp}')
            a(f'v_sqrt_f32 v{ex2}, v{ex2}'); a(f'v_cvt_pk_bf16_f32 v{tmp}, v{ex2}, v{ex2}'); a(f'v_lshlrev_b32 v{ex2}, 16, v{tmp}')
            a(f'v_rcp_f32 v{RI+Tt}, v{ex2}')
            a(f'v_sub_f32 v{NM+2*Tt}, 0, v{mean}'); a(f'v_sub_f32 v{NM+2*Tt+1}, 0, v{mean}')
            a(f'v_mul_f32 v{K1+2*Tt}, s85, v{RI+Tt}'); a(f'v_mul_f32 v{K1+2*Tt+1}, s85, v{RI+Tt}')
        R.release(*self.zrel)
        vs = R.alloc('v', 'vs', 4)
        a(f'v_lshlrev_b32 v{vs}, 3, v{L}')
        a(f's_lshl_b32 s{T}, s{self.S_MT}, 10'); a(f's_lshl_b32 s{T+1}, s{self.S_W}, 8'); a(f's_add_u32 s{T}, s{T}, s{T+1}'); a(f's_add_u32 s{T}, s{T}, {WS_STAT}')
        a(f's_cmp_eq_u32 s{self.S_NT}, 0'); a('s_cselect_b64 exec, 0xffff, 0')
        for Tt in range(2):
            a(f'v_sub_f32 v{vs+2}, 0, v{NM+2*Tt}'); a(f'v_mov_b32 v{vs+3}, v{RI+Tt}')
            a(f'buffer_store_dwordx2 {rr("v", vs+2, 2)}, v{vs}, {self.D(self.SRD_WS)}, s{T} offen offset:{Tt*128} sc1', vm='hst')
            a('s_nop 1')
        a('s_mov_b64 exec, -1')
        R.release('vs', 'RI')
        a(f's_lshr_b32 s{T}, s{self.S_W}, 1'); a(f's_lshl_b32 s{T+1}, s{self.S_MT}, 1'); a(f's_add_u32 s{T}, s{T}, s{T+1}')
        a(f's_mul_i32 s{T}, s{T}, {TILE_B}'); a(f's_add_u32 s{T}, s{T}, {WS_HF}')
        a(f's_and_b32 s{T+1}, s{self.S_W}, 1'); a(f's_lshl_b32 s{T+1}, s{T+1}, 11'); a(f's_add_u32 s{T}, s{T}, s{T+1}')
        a(f's_lshr_b32 s{T+1}, s{self.S_NT}, 1'); a(f's_mul_i32 s{T+1}, s{T+1}, {7*4096}'); a(f's_add_u32 s{T}, s{T}, s{T+1}')
        a(f's_and_b32 s{T+1}, s{self.S_NT}, 1')
        a(f's_mul_i32 s64, s{T+1}, {3*4096}'); a(f's_add_u32 s86, s{T}, s64')
        a(f's_lshl_b32 s64, s{T+1}, 9'); a(f's_add_u32 s87, s{T}, s64'); a(f's_add_u32 s87, s87, {6*4096}')
        v8 = R.alloc('v', 'v8', 1)
        a(f'v_lshlrev_b32 v{v8}, 3, v{L}')
        v16 = self.vL16
        a.wait_lg('cb')
        Z = R.alloc('v', 'Z', 8); E = R.alloc('v', 'E', 8); HP = R.alloc('v', 'HP', 8)
        self.conv_fill = self.w2f
        self.fq = self.hc_fill(); self.f_every = self.o('e1_every', 24); self.f_cnt = 0
        flip = [0]
        def silu_tiles(tiles, Tt):
            dst = HP + 4 * flip[0]; flip[0] ^= 1
            n = len(tiles)
            for u, tt in enumerate(tiles):
                for hlf in range(2):
                    acc = self.ACC + (tt * 2 + Tt) * 4 + 2 * hlf
                    v(f'v_pk_fma_f32 {rr("v", Z+4*u+2*hlf, 2)}, {rr("v", CB+4*tt+2*hlf, 2)}, {rr("v", NM+2*Tt, 2)}, {rr("v", acc, 2)}')
            for u in range(2 * n): v(f'v_pk_mul_f32 {rr("v", Z+2*u, 2)}, {rr("v", Z+2*u, 2)}, {rr("v", K1+2*Tt, 2)}')
            for u in range(4 * n): v(f'v_exp_f32 v{E+u}, v{Z+u}')
            for u in range(2 * n): v(f'v_pk_fma_f32 {rr("v", E+2*u, 2)}, {rr("v", E+2*u, 2)}, {rr("v", LL, 2)}, {rr("v", LL, 2)}')
            for u in range(4 * n): v(f'v_rcp_f32 v{E+u}, v{E+u}')
            for u in range(2 * n): v(f'v_pk_mul_f32 {rr("v", Z+2*u, 2)}, {rr("v", Z+2*u, 2)}, {rr("v", E+2*u, 2)}')
            for u in range(2 * n): v(f'v_cvt_pk_bf16_f32 v{dst+u}, v{Z+2*u}, v{Z+2*u+1}')
            return dst
        for m in range(3):
            for Tt in range(2):
                dst = silu_tiles((2 * m, 2 * m + 1), Tt)
                a(f's_add_u32 s{T}, s86, {m*4096}')
                a(f'buffer_store_dwordx4 {rr("v", dst, 4)}, v{v16}, {self.D(self.SRD_WS)}, s{T} offen offset:{Tt*1024} {self.o("hst_sc", "sc1")}', vm='hst')
        for Tt in range(2):
            dst = silu_tiles((6,), Tt)
            a(f'buffer_store_dwordx2 {rr("v", dst, 2)}, v{v8}, {self.D(self.SRD_WS)}, s87 offen offset:{Tt*1024} {self.o("hst_sc", "sc1")}', vm='hst')
        self.flush_fill(); self.f_every = 0
        R.release('t', 'NM', 'K1', 'LL', 'CB', 'v8', 'Z', 'E', 'ACC', 'SX', 'GR', 'CL')
        self.hp_rel = ['HP']
        self.stamp('e1_done')

    def conv(self):
        a, R, T = self.a, self.R, self.T
        L = self.vLANE
        t = R.alloc('v', 't', 6)
        a(f'v_lshrrev_b32 v{t}, 2, v0'); a(f'v_mul_u32_u24 v{t}, 80, v{t}'); a(f'v_and_b32 v{t+1}, 3, v0'); a(f'v_lshl_add_u32 v{t}, v{t+1}, 4, v{t}')
        a.wait_vm('ur')
        a(f'ds_write_b128 v{t}, {rr("v", self.URR, 4)}', lg='x'); a(f'ds_write_b128 v{t}, {rr("v", self.URR+4, 4)} offset:7600', lg='x')
        S_CH, S_ROLE = 86, 87
        a(f's_lshr_b32 s{S_CH}, s{self.S_W}, 1'); a(f's_and_b32 s{S_ROLE}, s{self.S_W}, 1')
        vHA = R.alloc('v', 'vHA', 1); vUB = R.alloc('v', 'vUB', 2); vUE = R.alloc('v', 'vUE', 1)
        a(f'v_and_b32 v{t+1}, 3, v{L}'); a(f'v_mul_u32_u24 v{t+1}, 4160, v{t+1}')
        a(f'v_bfe_u32 v{t+2}, v{L}, 2, 3'); a(f'v_lshl_add_u32 v{t+1}, v{t+2}, 3, v{t+1}')
        a(f'v_lshrrev_b32 v{t+2}, 5, v{L}'); a(f'v_lshl_add_u32 v{t+1}, v{t+2}, 4, v{t+1}')
        a(f's_mul_i32 s{T}, s{S_CH}, 16640'); a(f's_lshl_b32 s{T+1}, s{S_ROLE}, 10'); a(f's_add_u32 s{T}, s{T}, s{T+1}'); a(f's_add_u32 s{T}, s{T}, {L_HC}')
        a(f'v_add_u32 v{vHA}, s{T}, v{t+1}')
        a(f'v_and_b32 v{t+1}, 31, v{L}'); a(f'v_sub_u32 v{t+1}, 63, v{t+1}'); a(f'v_mul_u32_u24 v{t+1}, 80, v{t+1}')
        a(f's_mul_i32 s{T}, s{S_CH}, 7600')
        a(f'v_add_u32 v{t+1}, s{T}, v{t+1}')
        a(f's_mul_i32 s{T+1}, s{S_ROLE}, 2560')
        a(f'v_lshlrev_b32 v{t+3}, 3, v{t+2}'); a(f'v_sub_u32 v{t+3}, 8, v{t+3}'); a(f'v_add_u32 v{t+3}, v{t+3}, v{t+1}'); a(f'v_subrev_u32 v{vUE}, s{T+1}, v{t+3}')
        a(f'v_lshl_add_u32 v{t+1}, v{t+2}, 4, v{t+1}')
        a(f's_mul_i32 s{T+1}, s{S_ROLE}, 1280')
        a(f'v_add_u32 v{vUB}, s{T+1}, v{t+1}'); a(f'v_subrev_u32 v{vUB+1}, 2560, v{vUB}')
        a('s_waitcnt lgkmcnt(0)')
        a('s_barrier')
        self.stamp('conv_start')
        R.release('URR')
        Y = R.alloc('v', 'Y', 32)
        NB = 3
        FR = R.alloc('v', 'FR', 20 * NB)
        def fr(b, j): return FR + b * 20 + 4 * j
        def reads(j):
            b = j % NB
            oa, ob = j * 32, (j >> 1) * 80 + (j & 1) * 32
            oa2, ob2 = oa + 2048, ob + 2560
            return [f'ds_read_b64 {rr("v", fr(b, 0), 2)}, v{vHA} offset:{oa}',
                    f'ds_read_b64 {rr("v", fr(b, 0)+2, 2)}, v{vHA} offset:{oa+8}',
                    f'ds_read_b128 {rr("v", fr(b, 1), 4)}, v{vUB} offset:{ob}',
                    f'ds_read_b128 {rr("v", fr(b, 2), 4)}, v{vUB+1} offset:{ob}',
                    f'ds_read_b64 {rr("v", fr(b, 3), 2)}, v{vHA} offset:{oa2}',
                    f'ds_read_b64 {rr("v", fr(b, 3)+2, 2)}, v{vHA} offset:{oa2+8}',
                    f'ds_read_b128 {rr("v", fr(b, 4), 4)}, v{vUB+1} offset:{ob2}']
        for j in range(2):
            for x in reads(j): a(x, lg=f'c{j}')
        fill = list(self.conv_fill)
        for j in range(32):
            b = j % NB
            if j == self.o('hsig_it', 10):
                a.wait_vm('hst'); a('s_barrier'); self.signal('H', self.S_MT); R.release(*self.hp_rel)
                self.stamp('h_signaled')
            if j == self.o('pollH_it', 24):
                a(f's_lshr_b32 s64, s{self.S_MT64}, 1')
                self.poll_issue('H', [('H', 64)])
            a.wait_lg(f'c{j}')
            nxt = reads(j + 2) if j + 2 < 32 else []
            y0, y1 = rr('v', Y, 16), rr('v', Y + 16, 16)
            c0 = '0' if j == 0 else y0; c1 = '0' if j == 0 else y1
            mf = [f'v_mfma_f32_32x32x16_bf16 {y0}, {rr("v", fr(b, 0), 4)}, {rr("v", fr(b, 1), 4)}, {c0}',
                  f'v_mfma_f32_32x32x16_bf16 {y1}, {rr("v", fr(b, 0), 4)}, {rr("v", fr(b, 2), 4)}, {c1}',
                  f'v_mfma_f32_32x32x16_bf16 {y1}, {rr("v", fr(b, 3), 4)}, {rr("v", fr(b, 4), 4)}, {y1}']
            parts = [nxt[0:3], nxt[3:5], nxt[5:7]]
            for u, (m, pr) in enumerate(zip(mf, parts)):
                a(m)
                for x in pr: a(x, lg=f'c{j+2}')
                if u == 2 and fill and j >= self.o('cv_fill0', 4): fill.pop(0)()
                if u == 0 and fill and j >= self.o('cv_fill0', 4) and len(fill) > 32 - j: fill.pop(0)()
            if self.o('stamp_cv', 0) and j % 4 == 3: self.stamp(f'cv{j}')
        for f in fill: f()
        R.release('FR', 'vHA', 'vUB')
        self.stamp('conv_main_done')
        self.poll_check('H', 16)
        a('s_nop 7'); a('s_nop 3')
        a(f's_cmp_eq_u32 s{S_ROLE}, 0'); a('s_cbranch_scc1 L_noswap')
        for j in range(16): a(f'v_swap_b32 v{Y+j}, v{Y+16+j}')
        a.label('L_noswap')
        a(f's_lshl_b32 s{T}, s{self.S_W}, 12'); a(f's_add_u32 s{T}, s{T}, {L_RED}')
        a(f'v_lshlrev_b32 v{t}, 4, v{L}'); a(f'v_add_u32 v{t+1}, s{T}, v{t}')
        for j in range(4): a(f'ds_write_b128 v{t+1}, {rr("v", Y+16+4*j, 4)} offset:{j*1024}', lg='x')
        a(f's_xor_b32 s{T}, s{T}, 4096'); a(f'v_add_u32 v{t+1}, s{T}, v{t}')
        UU = R.alloc('v', 'UU', 8)
        for j in range(4): a(f'ds_read_b64 {rr("v", UU+2*j, 2)}, v{vUE} offset:{48-16*j}', lg='x')
        a('s_waitcnt lgkmcnt(0)')
        a('s_barrier')
        self.stamp('pollH')
        PT = R.alloc('v', 'PT', 16)
        for j in range(4): a(f'ds_read_b128 {rr("v", PT+4*j, 4)}, v{t+1} offset:{j*1024}', lg=f'pt{j}')
        self.HB = R.alloc('v', 'HB', 16 * self.NBH)
        for sg in range(self.NBH): self.h_load(sg)
        a(f'v_and_b32 v{t+2}, 31, v{L}'); a(f'v_mul_u32_u24 v{t+2}, 80, v{t+2}'); a(f'v_lshrrev_b32 v{t+3}, 5, v{L}'); a(f'v_lshl_add_u32 v{t+2}, v{t+3}, 3, v{t+2}')
        a(f's_mul_i32 s{T}, s{S_CH}, 5120'); a(f's_mul_i32 s{T+1}, s{S_ROLE}, 2560'); a(f's_add_u32 s{T}, s{T}, s{T+1}'); a(f's_add_u32 s{T}, s{T}, {L_YS}')
        a(f'v_add_u32 v{t+2}, s{T}, v{t+2}')
        DD = R.alloc('v', 'DD', 2); U4 = R.alloc('v', 'U4', 4); OP = R.alloc('v', 'OP', 8)
        a(f's_lshl_b32 s{T}, s95, 16'); a(f's_and_b32 s{T+1}, s95, 0xffff0000'); a(f's_cmp_eq_u32 s{S_CH}, 0'); a(f's_cselect_b32 s{T}, s{T}, s{T+1}')
        a(f'v_mov_b32 v{DD}, s{T}'); a(f'v_mov_b32 v{DD+1}, s{T}')
        for j in range(4):
            a.wait_lg(f'pt{j}')
            for h in range(2):
                r = rr('v', Y + 4 * j + 2 * h, 2)
                a(f'v_pk_add_f32 {r}, {r}, {rr("v", PT+4*j+2*h, 2)}')
            d0, d1 = UU + 2 * j, UU + 2 * j + 1
            a(f'v_and_b32 v{U4}, 0xffff0000, v{d1}'); a(f'v_lshlrev_b32 v{U4+1}, 16, v{d1}')
            a(f'v_and_b32 v{U4+2}, 0xffff0000, v{d0}'); a(f'v_lshlrev_b32 v{U4+3}, 16, v{d0}')
            for h in range(2):
                r = rr('v', Y + 4 * j + 2 * h, 2)
                a(f'v_pk_fma_f32 {r}, {rr("v", U4+2*h, 2)}, {rr("v", DD, 2)}, {r}')
            a(f'v_cvt_pk_bf16_f32 v{OP+2*j}, v{Y+4*j}, v{Y+4*j+1}'); a(f'v_cvt_pk_bf16_f32 v{OP+2*j+1}, v{Y+4*j+2}, v{Y+4*j+3}')
            a(f'ds_write_b64 v{t+2}, {rr("v", OP+2*j, 2)} offset:{16*j}', lg='x')
        R.release('Y', 'UU', 'PT', 'DD', 'U4', 'OP', 'vUE')
        YO = R.alloc('v', 'YO', 8)
        a(f'v_lshrrev_b32 v{t}, 2, v0'); a(f'v_mul_u32_u24 v{t}, 80, v{t}'); a(f'v_and_b32 v{t+1}, 3, v0'); a(f'v_lshl_add_u32 v{t}, v{t+1}, 4, v{t}')
        a(f'v_add_u32 v{t}, {L_YS}, v{t}')
        a(f's_lshl_b32 s{T}, s{self.S_X}, 18'); a(f's_lshl_b32 s{T+1}, s{self.S_I}, 13'); a(f's_add_u32 s{T}, s{T}, s{T+1}'); a(f's_add_u32 s{T}, s{T}, {WS_Y2T}')
        a(f's_add_u32 s{T+1}, s{T}, 4096')
        a(f'v_lshlrev_b32 v{t+1}, 4, v0')
        a('s_waitcnt lgkmcnt(0)')
        a('s_barrier')
        a(f'ds_read_b128 {rr("v", YO, 4)}, v{t}', lg='x'); a(f'ds_read_b128 {rr("v", YO+4, 4)}, v{t} offset:5120', lg='x')
        a('s_waitcnt lgkmcnt(0)')
        a(f'buffer_store_dwordx4 {rr("v", YO, 4)}, v{t+1}, {self.D(self.SRD_WS)}, s{T} offen sc1', vm='yst')
        a(f'buffer_store_dwordx4 {rr("v", YO+4, 4)}, v{t+1}, {self.D(self.SRD_WS)}, s{T+1} offen sc1', vm='yst')
        self.stamp('conv_done')
        self.yo_rel = ['YO', 't']

    def g2_setup(self):
        a, R, T = self.a, self.R, self.T
        L = self.vLANE
        a(f's_lshl_b32 s{self.S_MT64}, s{self.S_X}, 2'); a(f's_and_b32 s{T}, s{self.S_I}, 3'); a(f's_add_u32 s{self.S_MT64}, s{self.S_MT64}, s{T}')
        a(f's_lshr_b32 s{self.S_DT}, s{self.S_I}, 2')
        a(f's_mul_i32 s{T}, s{self.S_W}, {14*4096}')
        a(f's_mul_i32 s{self.S_W2O}, s{self.S_DT}, {TILE_B}'); a(f's_add_u32 s{self.S_W2O}, s{self.S_W2O}, s{T}'); a(f's_add_u32 s{self.S_W2O}, s{self.S_W2O}, {WS_W2F}')
        a(f's_mul_i32 s{self.S_HO}, s{self.S_MT64}, {TILE_B}'); a(f's_add_u32 s{self.S_HO}, s{self.S_HO}, s{T}'); a(f's_add_u32 s{self.S_HO}, s{self.S_HO}, {WS_HF}')
        self.vL16 = R.alloc('v', 'vL16', 1)
        a(f'v_lshlrev_b32 v{self.vL16}, 4, v{L}')
        self.W2A = R.alloc('a', 'W2A', 224)

    def h_setup(self):
        a, R, T = self.a, self.R, self.T
        self.vH16 = R.alloc('v', 'vH16', 4, align=1); self.vH8 = R.alloc('v', 'vH8', 4, align=1)
        for u in range(4):
            a(f's_add_u32 s{T}, s{self.S_W}, {u}'); a(f's_and_b32 s{T}, s{T}, 3'); a(f's_lshl_b32 s{T}, s{T}, 10')
            a(f'v_add_u32 v{self.vH16+u}, s{T}, v{self.vL16}')
            a(f'v_lshrrev_b32 v{self.vH8+u}, 1, v{self.vL16}'); a(f'v_add_u32 v{self.vH8+u}, s{T}, v{self.vH8+u}')

    def w2_fill(self):
        a = self.a
        L = []
        for sg in range(14):
            for dl in range(4):
                def f(sg=sg, dl=dl):
                    d = self.W2A + (sg * 4 + dl) * 4
                    a(f'buffer_load_dwordx4 {rr("a", d, 4)}, v{self.vL16}, {self.D(self.SRD_WS)}, s{self.S_W2O} offen offset:{dl*1024} {self.o("w2f_sc", "sc1")}', vm=f'w2f{sg}')
                    if dl == 3: a(f's_add_u32 s{self.S_W2O}, s{self.S_W2O}, 4096')
                L.append(f)
        return L

    def h_load(self, sg):
        a = self.a
        b = sg % self.NBH
        for u in range(4):
            d = self.HB + b * 16 + u * 4
            if sg % 7 == 6:
                a(f'buffer_load_dwordx2 {rr("v", d, 2)}, v{self.vH8+u}, {self.D(self.SRD_WS)}, s{self.S_HO} offen {self.o("h_sc", "sc1")}', vm=f'h{sg}')
                a(f'buffer_load_dwordx2 {rr("v", d+2, 2)}, v{self.vH8+u}, {self.D(self.SRD_WS)}, s{self.S_HO} offen offset:512 {self.o("h_sc", "sc1")}', vm=f'h{sg}')
            else:
                a(f'buffer_load_dwordx4 {rr("v", d, 4)}, v{self.vH16+u}, {self.D(self.SRD_WS)}, s{self.S_HO} offen {self.o("h_sc", "sc1")}', vm=f'h{sg}')
        a(f's_add_u32 s{self.S_HO}, s{self.S_HO}, 4096')

    def g2(self):
        a, R, T = self.a, self.R, self.T
        L = self.vLANE
        ACC = R.alloc('v', 'ACC2', 64)
        def acc(dl, u): return ACC + (dl * 4 + u) * 4
        XR = R.alloc('v', 'XR', 8); ST = R.alloc('v', 'ST', 2); vO = R.alloc('v', 'vO', 1); t = R.alloc('v', 't2', 8)
        self.stamp('g2_start')
        for sg in range(14):
            if sg == self.o('ysig_sg', 3):
                a.wait_vm('yst'); a('s_barrier'); self.signal('Y', self.S_X); R.release(*self.yo_rel)
            if sg == self.o('pollY_sg', 10):
                self.poll_issue('Y', [('Y', self.S_DT)])
            if sg == 11:
                a(f'v_and_b32 v{t}, 15, v{L}'); a(f'v_lshrrev_b32 v{t+1}, 4, v{L}')
                a(f's_lshl_b32 s{T}, s{self.S_MT64}, 6'); a(f's_lshl_b32 s{T+1}, s{self.S_W}, 4'); a(f's_add_u32 s{T}, s{T}, s{T+1}')
                a(f'v_add_u32 v{t}, s{T}, v{t}')
                a(f'v_lshlrev_b32 v{vO}, 10, v{t}'); a(f'v_lshl_add_u32 v{vO}, v{t+1}, 5, v{vO}')
                a(f's_lshl_b32 s{T}, s{self.S_DT}, 7'); a(f'v_add_u32 v{vO}, s{T}, v{vO}')
                a(f'buffer_load_dwordx4 {rr("v", XR, 4)}, v{vO}, {self.D(self.SRD_Q)}, 0 offen', vm='xr')
                a(f'buffer_load_dwordx4 {rr("v", XR+4, 4)}, v{vO}, {self.D(self.SRD_Q)}, 0 offen offset:16', vm='xr')
                a(f'v_lshlrev_b32 v{t}, 3, v{t}'); a(f's_mov_b32 s{T}, {WS_STAT}')
                a(f'buffer_load_dwordx2 {rr("v", ST, 2)}, v{t}, {self.D(self.SRD_WS)}, s{T} offen sc1', vm='xr')
            a.wait_vm(f'h{sg}', f'w2f{sg}')
            b = sg % self.NBH
            for dl in range(4):
                for u in range(4):
                    d = rr('v', acc(dl, u), 4)
                    a(f'v_mfma_f32_16x16x32_bf16 {d}, {rr("a", self.W2A+(sg*4+dl)*4, 4)}, {rr("v", self.HB+b*16+u*4, 4)}, {"0" if sg == 0 else d}')
            if sg + self.NBH < 14: self.h_load(sg + self.NBH)
            if self.o('stamp_g2', 0): self.stamp(f'g2s{sg}')
        R.release('W2A', 'HB', 'vH16', 'vH8')
        self.stamp('g2_main_done')
        self.poll_check('Y', 32)
        a('s_nop 7')
        a('s_barrier')
        self.stamp('pollY')
        YR = R.alloc('v', 'YR', 8)
        a(f'v_lshrrev_b32 v{t}, 3, v0'); a(f'v_and_b32 v{t+1}, 7, v0')
        a(f'v_lshlrev_b32 v{t+2}, 12, v{t}'); a(f'v_lshl_add_u32 v{t+2}, v{t+1}, 4, v{t+2}')
        a(f's_lshl_b32 s{T}, s{self.S_DT}, 18'); a(f's_lshl_b32 s{T+1}, s{self.S_MT64}, 7'); a(f's_add_u32 s{T}, s{T}, s{T+1}'); a(f's_add_u32 s{T}, s{T}, {WS_Y2T}')
        a(f's_add_u32 s{T+1}, s{T}, {32*4096}')
        a(f'buffer_load_dwordx4 {rr("v", YR, 4)}, v{t+2}, {self.D(self.SRD_WS)}, s{T} offen sc1', vm='yr')
        a(f'buffer_load_dwordx4 {rr("v", YR+4, 4)}, v{t+2}, {self.D(self.SRD_WS)}, s{T+1} offen sc1', vm='yr')
        a(f'v_mul_u32_u24 v{t+2}, 144, v{t}'); a(f'v_lshl_add_u32 v{t+2}, v{t+1}, 4, v{t+2}'); a(f'v_add_u32 v{t+2}, {L_YT}, v{t+2}')
        for u in range(1, 4):
            a(f's_add_u32 s{T}, s{self.S_W}, {u}'); a(f's_and_b32 s{T}, s{T}, 3'); a(f's_mul_i32 s{T}, s{T}, {3*4096}'); a(f's_add_u32 s{T}, s{T}, {L_RED2 + (u-1)*4096}')
            a(f'v_add_u32 v{t+3}, s{T}, v{self.vL16}')
            for dl in range(4): a(f'ds_write_b128 v{t+3}, {rr("v", acc(dl, u), 4)} offset:{dl*1024}', lg='x')
        a.wait_vm('yr')
        a(f'ds_write_b128 v{t+2}, {rr("v", YR, 4)}', lg='x'); a(f'ds_write_b128 v{t+2}, {rr("v", YR+4, 4)} offset:{32*144}', lg='x')
        XU = R.alloc('v', 'XU', 16); YU = R.alloc('v', 'YU', 16); NM = R.alloc('v', 'NM', 4); OD = R.alloc('v', 'OD', 8)
        a.wait_vm('xr')
        for r in range(4):
            for dl in range(4):
                sx = XR + 2 * r + (dl >> 1)
                if dl & 1: a(f'v_and_b32 v{XU+4*dl+r}, 0xffff0000, v{sx}')
                else: a(f'v_lshlrev_b32 v{XU+4*dl+r}, 16, v{sx}')
        a(f'v_sub_f32 v{NM}, 0, v{ST}'); a(f'v_sub_f32 v{NM+1}, 0, v{ST}'); a(f'v_mov_b32 v{NM+2}, v{ST+1}'); a(f'v_mov_b32 v{NM+3}, v{ST+1}')
        XN = R.alloc('v', 'XN', 16)
        for dl in range(4):
            for h in range(2):
                xn = rr('v', XN+4*dl+2*h, 2)
                a(f'v_pk_add_f32 {xn}, {rr("v", XU+4*dl+2*h, 2)}, {rr("v", NM, 2)}'); a(f'v_pk_mul_f32 {xn}, {xn}, {rr("v", NM+2, 2)}')
        a(f's_mul_i32 s{T}, s{self.S_W}, {3*4096}'); a(f's_add_u32 s{T}, s{T}, {L_RED2}')
        a(f'v_add_u32 v{t}, s{T}, v{self.vL16}')
        a(f'v_lshrrev_b32 v{t+1}, 4, v{L}'); a(f'v_lshlrev_b32 v{t+1}, 4, v{t+1}'); a(f'v_bfe_u32 v{t+2}, v{L}, 2, 2'); a(f'v_add_u32 v{t+1}, v{t+1}, v{t+2}')
        a(f'v_mul_u32_u24 v{t+1}, 144, v{t+1}'); a(f'v_and_b32 v{t+2}, 3, v{L}'); a(f'v_lshl_add_u32 v{t+1}, v{t+2}, 3, v{t+1}')
        a(f's_lshl_b32 s{T}, s{self.S_W}, 5'); a(f's_add_u32 s{T}, s{T}, {L_YT}'); a(f'v_add_u32 v{t+1}, s{T}, v{t+1}')
        a('s_waitcnt lgkmcnt(0)')
        a('s_barrier')
        self.stamp('g2_red_written')
        R.release('YR')
        PR = R.alloc('v', 'PR', 48); YV = R.alloc('v', 'YV', 8)
        for r in range(4): a(f'ds_read_b64_tr_b16 {rr("v", YV+2*r, 2)}, v{t+1} offset:{r*4*144}', lg='yv')
        for u in range(3):
            for dl in range(4): a(f'ds_read_b128 {rr("v", PR+16*u+4*dl, 4)}, v{t} offset:{u*4096+dl*1024}', lg=f'pr{u}')
        a.wait_lg('yv')
        for r in range(4):
            for dl in range(4):
                sy = YV + 2 * r + (dl >> 1)
                if dl & 1: a(f'v_and_b32 v{YU+4*dl+r}, 0xffff0000, v{sy}')
                else: a(f'v_lshlrev_b32 v{YU+4*dl+r}, 16, v{sy}')
        for dl in range(4):
            for h in range(2):
                x2, y2, xn = rr('v', XU+4*dl+2*h, 2), rr('v', YU+4*dl+2*h, 2), rr('v', XN+4*dl+2*h, 2)
                a(f'v_pk_fma_f32 {x2}, {xn}, {y2}, {x2}')
        for u in range(3):
            a.wait_lg(f'pr{u}')
            for dl in range(4):
                for h in range(2):
                    x2 = rr('v', XU+4*dl+2*h, 2)
                    src = rr('v', PR+16*u+4*dl+2*h, 2)
                    if u == 0:
                        b2 = rr('v', acc(dl, 0) + 2 * h, 2)
                        a(f'v_pk_add_f32 {b2}, {b2}, {src}')
                    else:
                        b2 = rr('v', acc(dl, 0) + 2 * h, 2)
                        a(f'v_pk_add_f32 {b2}, {b2}, {src}')
        for dl in range(4):
            for h in range(2):
                b2 = rr('v', acc(dl, 0) + 2 * h, 2)
                a(f'v_pk_add_f32 {b2}, {b2}, {rr("v", XU+4*dl+2*h, 2)}')
        for r in range(4):
            for h in range(2):
                a(f'v_cvt_pk_bf16_f32 v{OD+2*r+h}, v{acc(2*h, 0)+r}, v{acc(2*h+1, 0)+r}')
        a(f'buffer_store_dwordx4 {rr("v", OD, 4)}, v{vO}, {self.D(self.SRD_OUT)}, 0 offen', vm='out')
        a(f'buffer_store_dwordx4 {rr("v", OD+4, 4)}, v{vO}, {self.D(self.SRD_OUT)}, 0 offen offset:16', vm='out')
        self.stamp('end')

    def finish(self):
        a = self.a
        if self.stamps:
            T = self.T
            a(f's_lshl_b32 s{T}, s2, 2'); a(f's_add_u32 s{T}, s{T}, s{self.S_W}'); a(f's_lshl_b32 s{T}, s{T}, 8'); a(f's_add_u32 s{T}, s{T}, 0xF00000')
            a(f's_mov_b32 s{self.SRD_WS+2}, 0x1000000')
            t = self.R.alloc('v', 'fin', 1)
            a(f'v_lshlrev_b32 v{t}, 2, v{self.vLANE}')
            a(f'buffer_store_dword v{self.vSTAMP}, v{t}, {self.D(self.SRD_WS)}, s{T} offen')
        a.label('L_end')
        a('s_endpgm')

    def build(self):
        a = self.a
        self.prologue()
        self.kv_loads()
        self.w2_task_loads()
        self.g1_setup()
        for f in self.slot_fill(0): f()
        self.hk_setup()
        self.g2_setup()
        a('s_waitcnt lgkmcnt(0)')
        self.stamp('issued0')
        self.fq = self.slot_fill(1) + self.slot_fill(2) + (self.slot_fill(3) if self.o('pre_slots', 4) == 4 else [])
        self.f_every = self.o('p0_every', 6); self.f_cnt = 0
        self.p0_compute()
        self.f_every = 0
        self.g1_main()
        self.g1_epilogue()
        self.h_setup()
        self.conv()
        self.g2()
        self.finish()
        a.finalize()
        body = a.text()
        ninstr = sum(1 for l in body.splitlines() if l.startswith('    '))
        est = ninstr * 8
        lsh = 2
        while 128 * (64 << lsh) < est: lsh += 1
        body = body.replace('PF_SHIFT', str(lsh + 6)).replace('PF_LSH', str(lsh))
        hdr = open('cdna_kernels/' + KNAME[:-7] + '.s.ref').read().split('; Override launch geometry')[0]
        out = hdr
        out += '; Written with my own generator script (gen/kgen2.py): one fused launch, 256 workgroups.\n'
        out += f'; @launch grid=(256,1,1) block=(256,1,1) lds={LDS_BYTES}\n'
        out += '.amdgcn_target "amdgcn-amd-amdhsa--gfx950"\n.text\n'
        out += f'.globl {KNAME}\n.p2align 8\n.type {KNAME},@function\n{KNAME}:\n'
        out += body
        out += f'''.section .rodata,"a"
.p2align 6
.amdhsa_kernel {KNAME}
  .amdhsa_next_free_vgpr 512
  .amdhsa_next_free_sgpr 102
  .amdhsa_accum_offset 256
  .amdhsa_group_segment_fixed_size 0
  .amdhsa_kernarg_size 96
  .amdhsa_user_sgpr_count 2
  .amdhsa_user_sgpr_kernarg_segment_ptr 1
  .amdhsa_system_sgpr_workgroup_id_x 1
  .amdhsa_float_denorm_mode_32 3
.end_amdhsa_kernel
'''
        return out

if __name__ == '__main__':
    out = sys.argv[1]
    stamps = 'stamps' in sys.argv[2:]
    opt = dict(x.split('=') for x in sys.argv[2:] if '=' in x)
    k = K(stamps, opt)
    s = k.build()
    open(out, 'w').write(s)
    print('instrs', sum(1 for l in s.splitlines() if l.startswith('    ')), 'nops', k.a.nops_inserted, 'hi', k.R.hi)
    if stamps:
        open(out + '.stamps', 'w').write(','.join(k.stamp_names))
```

```python
import sys
from asmlib import Asm, Regs, rr

KNAME = "parallel_sum__ssm_conv_h3__dense_activation_silu__prompt_kernel"

WS_KVT  = 0x000000
WS_W2F  = 0x200000
WS_HF   = 0x400000
WS_STAT = 0xB00000
WS_Y2T  = 0xC00000
WS_SIZE = 0xE00000
TILE_B  = 56 * 4096

SLOT   = 30720
L_HC   = 122880
L_KVS  = L_HC
L_SHK  = 156160
L_COL  = L_SHK + 2048
L_UR, L_RED, L_YS = 0, 16384, 32768
L_RED2, L_YT = 0, 65536
LDS_BYTES = 160 * 1024
OOB = 0x7FFFFFF0

class K:
    SRD_Q, SRD_K, SRD_V, SRD_W1, SRD_W2, SRD_WS, SRD_SK, SRD_SH, SRD_OUT = 28, 32, 36, 40, 44, 48, 52, 56, 60
    S_PTR = 4
    S_W, S_X, S_I, S_MT, S_NT = 68, 69, 70, 71, 72
    S_DBG = 24
    T = 74
    S_QO = 76
    S_WO, S_WL = 80, 81
    S_M3 = 64
    S_MT64, S_DT, S_W2O, S_HO = 88, 89, 90, 91
    S_STAMP = 96
    NBH = 6

    def __init__(self, stamps=False, opt=None):
        self.a = Asm(); self.R = Regs(); self.stamps = stamps; self.opt = opt or {}
        self.nstamp = 0; self.stamp_names = []
        self.fq = []; self.f_every = 0; self.f_cnt = 0; self._in_fill = False
        self.a.hook = None

    def o(self, k, d):
        v = type(d)(self.opt.get(k, d))
        return '' if v == 'none' else v

    def v(self, text):
        self.a(text)
        if self.fq and self.f_every:
            self.f_cnt += 1
            if self.f_cnt >= self.f_every:
                self.f_cnt = 0
                self.fq.pop(0)()
    def flush_fill(self):
        while self.fq: self.fq.pop(0)()

    def srd(self, dst, ptr, nbytes, add=None):
        a = self.a
        if add is None:
            a(f's_mov_b32 s{dst}, s{ptr}'); a(f's_and_b32 s{dst+1}, s{ptr+1}, 0xffff')
        else:
            a(f's_add_u32 s{dst}, s{ptr}, s{add}'); a(f's_addc_u32 s{dst+1}, s{ptr+1}, 0'); a(f's_and_b32 s{dst+1}, s{dst+1}, 0xffff')
        a(f's_mov_b32 s{dst+2}, {nbytes}'); a(f's_mov_b32 s{dst+3}, 0x20000')
    def D(self, s): return f's[{s}:{s+3}]'

    def stamp(self, name):
        if not self.stamps: return
        a = self.a
        j = self.nstamp; self.nstamp += 1; self.stamp_names.append(name)
        a(f's_memtime s[{self.S_STAMP}:{self.S_STAMP+1}]')
        lg = list(a.lg)
        a('s_waitcnt lgkmcnt(0)')
        a(f'v_writelane_b32 v{self.vSTAMP}, s{self.S_STAMP}, {j}')

    def prologue(self):
        a, R, T = self.a, self.R, self.T
        a('s_cmp_ge_u32 s2, 256'); a('s_cbranch_scc1 L_end')
        a('s_load_dwordx16 s[4:19], s[0:1], 0')
        a('s_load_dwordx8 s[20:27], s[0:1], 64')
        R.alloc('v', 'tid', 1, at=0)
        self.vLANE = R.alloc('v', 'lane', 1); self.vSTAMP = R.alloc('v', 'stamp', 1)
        a(f'v_and_b32 v{self.vLANE}, 63, v0')
        a(f'v_lshrrev_b32 v{self.vSTAMP}, 6, v0')
        a(f's_and_b32 s{self.S_X}, s2, 7')
        a(f'v_readfirstlane_b32 s{self.S_W}, v{self.vSTAMP}')
        a(f's_lshr_b32 s{self.S_I}, s2, 3')
        vt = R.alloc('v', 'pf', 2)
        a(f's_getpc_b64 s[{T}:{T+1}]')
        a.label('L_pc0')
        a(f's_lshl_b32 s64, s{self.S_I}, 2'); a(f's_add_u32 s64, s64, s{self.S_W}'); a(f's_lshl_b32 s64, s64, PF_SHIFT')
        a(f'v_lshlrev_b32 v{vt}, PF_LSH, v{self.vLANE}'); a(f'v_add_u32 v{vt}, s64, v{vt}')
        a(f'v_min_u32 v{vt}, L_end-L_pc0, v{vt}')
        a(f'global_load_dword v{vt+1}, v{vt}, s[{T}:{T+1}]', vm='pf')
        self.stamp('start')
        a(f's_and_b32 s{T}, s{self.S_X}, 3'); a(f's_lshl_b32 s{T}, s{T}, 2'); a(f's_and_b32 s{T+1}, s{self.S_I}, 3')
        a(f's_add_u32 s{self.S_MT}, s{T}, s{T+1}')
        a(f's_lshr_b32 s{T}, s{self.S_X}, 2'); a(f's_lshl_b32 s{T}, s{T}, 3'); a(f's_lshr_b32 s{T+1}, s{self.S_I}, 2')
        a(f's_add_u32 s{self.S_NT}, s{T}, s{T+1}')

    def kv_loads(self):
        a, R, T, P = self.a, self.R, self.T, self.S_PTR
        vb = R.alloc('v', 'kaddr', 5, align=1); t0 = R.alloc('v', 't0', 1); t1 = R.alloc('v', 't1', 1)
        a(f'v_and_b32 v{t0}, 7, v0'); a(f'v_lshlrev_b32 v{t0}, 4, v{t0}')
        a(f'v_lshrrev_b32 v{t1}, 3, v0'); a(f'v_lshlrev_b32 v{t1}, 11, v{t1}')
        a(f's_lshl_b32 s{T}, s{self.S_I}, 16'); a(f's_lshl_b32 s{T+1}, s{self.S_X}, 7')
        a(f's_add_u32 s{T}, s{T}, s{T+1}'); a(f's_sub_u32 s{T}, s{T}, 3072')
        a(f'v_add3_u32 v{vb}, v{t0}, v{t1}, s{T}')
        for j in range(1, 5): a(f'v_add_u32 v{vb+j}, {1024*j}, v{vb}')
        a(f'v_lshlrev_b32 v{t0}, 4, v{self.vLANE}'); a(f's_lshl_b32 s{T}, s{self.S_X}, 9')
        self.KR = R.alloc('v', 'KR', 20); self.VR = R.alloc('v', 'VR', 8); self.SHR = R.alloc('v', 'SHR', 4)
        a('s_waitcnt lgkmcnt(0)')
        self.stamp('karg')
        self.srd(self.SRD_K, P + 2, 2048 * 1024)
        for j in range(5):
            a(f'buffer_load_dwordx4 {rr("v", self.KR+4*j, 4)}, v{vb+j}, {self.D(self.SRD_K)}, 0 offen {self.o("in_nt", "nt")}', vm='kv')
        self.srd(self.SRD_V, P + 4, 2048 * 1024)
        for j in range(2):
            a(f'buffer_load_dwordx4 {rr("v", self.VR+4*j, 4)}, v{vb+3+j}, {self.D(self.SRD_V)}, 0 offen {self.o("in_nt", "nt")}', vm='kv')
        self.srd(self.SRD_SH, P + 6, 4096)
        a(f'buffer_load_dwordx4 {rr("v", self.SHR, 4)}, v{t0}, {self.D(self.SRD_SH)}, s{T} offen', vm='kv')
        R.release('kaddr', 't0', 't1')
        self.srd(self.SRD_W2, P + 16, 1792 * 1024)
        self.srd(self.SRD_Q, P + 0, 2048 * 1024)
        self.srd(self.SRD_W1, P + 14, 512 * 3584)
        wsb = self.o('ws_base', 0)
        if wsb:
            a(f's_mov_b32 s64, {wsb << 20}')
            self.srd(self.SRD_WS, P + 22, WS_SIZE, add=64)
        else:
            self.srd(self.SRD_WS, P + 22, WS_SIZE)
        self.srd(self.SRD_OUT, P + 18, 2048 * 1024)
        a(f's_lshl_b32 s{T}, s{self.S_X}, 5'); a(f's_add_u32 s{T}, s{T}, s{self.S_I}'); a(f's_lshl_b32 s{T+1}, s{T}, 2')
        a(f's_load_dword s95, s[{P+10}:{P+11}], s{T+1}')
        a(f's_lshl_b32 s{T}, s{T}, 13')
        self.srd(self.SRD_SK, P + 8, 8192, add=T)

    def w2_task_loads(self):
        a, R, T = self.a, self.R, self.T
        t0 = R.alloc('v', 't0', 1); t1 = R.alloc('v', 't1', 1)
        SIG, TA, TB = 82, 83, 84
        a(f's_lshl_b32 s{SIG}, s{self.S_W}, 5'); a(f's_add_u32 s{SIG}, s{SIG}, s{self.S_I}')
        a(f's_cmp_lt_u32 s{SIG}, 56'); a('s_cselect_b64 s[92:93], -1, 0'); a(f's_cselect_b32 s94, s{SIG}, 0')
        a(f's_mul_hi_u32 s{T}, s94, 0x24924925')
        a(f's_mul_i32 s{T+1}, s{T}, 7'); a(f's_sub_u32 s{T+1}, s94, s{T+1}')
        a(f's_mul_i32 s{T}, s{T}, 14')
        a(f's_lshl_b32 s{TA}, s{T+1}, 1')
        a(f's_cmp_ge_u32 s{T+1}, 3'); a(f's_cselect_b32 s{TB}, 1, 0'); a(f's_add_u32 s{TA}, s{TA}, s{TB}')
        a(f's_cmp_eq_u32 s{T+1}, 6'); a(f's_cselect_b32 s{TA}, 6, s{TA}'); a(f's_cselect_b32 s{TB}, 7, 1')
        a(f's_add_u32 s{TA}, s{TA}, s{T}'); a(f's_add_u32 s{TB}, s{TB}, s{TA}')
        a(f's_lshl_b32 s{TA}, s{TA}, 14'); a(f's_lshl_b32 s{TB}, s{TB}, 14')
        a(f's_lshl_b32 s{T}, s{self.S_X}, 7'); a(f's_add_u32 s{TA}, s{TA}, s{T}'); a(f's_add_u32 s{TB}, s{TB}, s{T}')
        a(f'v_lshrrev_b32 v{t0}, 4, v{self.vLANE}'); a(f'v_lshlrev_b32 v{t0}, 12, v{t0}')
        a(f'v_and_b32 v{t1}, 15, v{self.vLANE}'); a(f'v_lshl_add_u32 v{t0}, v{t1}, 3, v{t0}')
        self.W2R = R.alloc('v', 'W2R', 16)
        a('s_mov_b64 exec, s[92:93]')
        for j in range(8):
            so = TA if j < 4 else TB
            a(f'buffer_load_dwordx2 {rr("v", self.W2R+2*j, 2)}, v{t0}, {self.D(self.SRD_W2)}, s{so} offen offset:{(j&3)*1024} {self.o("in_nt", "nt")}', vm='w2')
        a('s_mov_b64 exec, -1')
        R.release('t0', 't1')

    def hk_setup(self):
        a, R = self.a, self.R
        self.HR = R.alloc('v', 'HR', 16); self.HX = R.alloc('v', 'HX', 2); self.vHK = R.alloc('v', 'vHK', 3, align=1)
        v = self.vHK; L = self.vLANE
        a(f'v_lshlrev_b32 v{v}, 4, v0'); a(f'v_add_u32 v{v+1}, 4096, v{v}')
        t = R.alloc('v', 'hkt', 1)
        a(f'v_and_b32 v{v+2}, 3, v{L}'); a(f'v_lshrrev_b32 v{t}, 2, v{L}'); a(f'v_lshlrev_b32 v{t}, 12, v{t}')
        a(f'v_cmp_eq_u32 vcc, 3, v{v+2}'); a(f'v_mov_b32 v{v+2}, {OOB}')
        a(f'v_cndmask_b32 v{v+2}, v{v+2}, v{t}, vcc')
        R.release('hkt')
    def hk_fill(self):
        a = self.a; v = self.vHK; S = self.D(self.SRD_SK)
        L = []
        for ch in range(2):
            L.append(lambda ch=ch: a(f'buffer_load_dwordx4 {rr("v", self.HR+8*ch, 4)}, v{v+ch}, {S}, 0 offen {self.o("in_nt", "nt")}', vm='hk'))
            L.append(lambda ch=ch: a(f'buffer_load_dwordx2 {rr("v", self.HR+8*ch+4, 2)}, v{v+ch}, {S}, 0 offen offset:16 {self.o("in_nt", "nt")}', vm='hk'))
        L.append(lambda: a(f'buffer_load_dwordx2 {rr("v", self.HX, 2)}, v{v+2}, {S}, 0 offen', vm='hk'))
        return L


    def touch_loads(self):
        a, R, T = self.a, self.R, self.T
        t = R.alloc('v', 'tch', 4); self.TD = R.alloc('v', 'tchd', 3, align=1)
        a(f'v_lshrrev_b32 v{t}, 3, v0'); a(f'v_and_b32 v{t+1}, 7, v0')
        a(f'v_lshlrev_b32 v{t}, 10, v{t}'); a(f'v_lshl_add_u32 v{t}, v{t+1}, 7, v{t}')
        a(f's_lshr_b32 s{T}, s{self.S_I}, 2'); a(f's_lshl_b32 s{T}, s{T}, 14'); a(f's_lshl_b32 s{T+1}, s{self.S_MT}, 17'); a(f's_add_u32 s{T}, s{T}, s{T+1}')
        a(f's_cmp_lt_u32 s{self.S_W}, 2'); a('s_cselect_b64 exec, -1, 0')
        a(f'buffer_load_dword v{self.TD}, v{t}, {self.D(self.SRD_Q)}, s{T} offen', vm='tch')
        a('s_mov_b64 exec, -1')
        a(f's_and_b32 s{T}, s{self.S_I}, 3'); a(f's_mul_i32 s{T}, s{T}, {128*3584}'); a(f's_mul_i32 s{T+1}, s{self.S_NT}, 224'); a(f's_add_u32 s{T}, s{T}, s{T+1}')
        a(f's_mov_b32 s{T+1}, 0x55555556')
        for h in range(2):
            a(f'v_add_u32 v{t}, {256*h}, v0')
            a(f'v_mul_hi_u32 v{t+1}, v{t}, s{T+1}'); a(f'v_mul_u32_u24 v{t+2}, 3, v{t+1}'); a(f'v_sub_u32 v{t+2}, v{t}, v{t+2}')
            a(f'v_mul_u32_u24 v{t+2}, 112, v{t+2}'); a(f'v_mul_u32_u24 v{t+1}, 3584, v{t+1}'); a(f'v_add_u32 v{t+1}, v{t+1}, v{t+2}')
            if h: a(f's_cmp_lt_u32 s{self.S_W}, 2'); a('s_cselect_b64 exec, -1, 0')
            a(f'buffer_load_dword v{self.TD+1+h}, v{t+1}, {self.D(self.SRD_W1)}, s{T} offen', vm='tch')
            if h: a('s_mov_b64 exec, -1')
        R.release('tch')

    def share_loads(self):
        a, R, T = self.a, self.R, self.T
        self.TD = R.alloc('v', 'tchd', 4)
        d = rr('v', self.TD, 4)
        a(f's_and_b32 s{T}, s{self.S_I}, 3'); a(f's_mul_i32 s{T}, s{T}, {128*3584}'); a(f's_add_u32 s{T}, s{T}, s80')
        a(f's_lshr_b32 s{T+1}, s{self.S_I}, 2'); a(f's_lshl_b32 s{T+1}, s{T+1}, 14'); a(f's_lshl_b32 s67, s{self.S_W}, 12'); a(f's_add_u32 s{T+1}, s{T+1}, s67')
        a(f's_lshl_b32 s67, s{self.S_MT}, 17'); a(f's_add_u32 s{T+1}, s{T+1}, s67')
        for h in range(2):
            for j in range(4):
                if j == 3: a(f's_mov_b64 exec, s[{self.S_M3}:{self.S_M3+1}]')
                a(f'buffer_load_dwordx4 {d}, v{self.vW+j}, {self.D(self.SRD_W1)}, s{T} offen', vm='tch')
                if j == 3: a('s_mov_b64 exec, -1')
                if j < 2: a(f'buffer_load_dwordx4 {d}, v{self.vL16}, {self.D(self.SRD_Q)}, s{T+1} offen offset:{(2*h+j)*1024}', vm='tch')
            a(f's_add_u32 s{T}, s{T}, {64*3584}')

    def g1_setup(self):
        a, R, T = self.a, self.R, self.T
        L = self.vLANE
        t0 = R.alloc('v', 't0', 1); t1 = R.alloc('v', 't1', 1); t2 = R.alloc('v', 't2', 1)
        self.vQ = R.alloc('v', 'vQ', 1)
        a(f'v_lshrrev_b32 v{t0}, 3, v{L}'); a(f'v_and_b32 v{t1}, 7, v{L}'); a(f'v_xor_b32 v{t1}, v{t1}, v{t0}')
        a(f'v_lshlrev_b32 v{t2}, 10, v{t0}'); a(f'v_lshl_add_u32 v{self.vQ}, v{t1}, 4, v{t2}')
        a(f's_lshl_b32 s{T}, s{self.S_MT}, 17'); a(f's_lshl_b32 s{T+1}, s{self.S_W}, 15'); a(f's_add_u32 s{self.S_QB}, s{T}, s{T+1}')
        a(f's_lshr_b32 s{T}, s{self.S_I}, 2'); a(f's_and_b32 s{T+1}, s{self.S_I}, 3'); a(f's_lshl_b32 s{T+1}, s{T+1}, 1')
        a(f's_add_u32 s{self.S_KP}, s{T}, s{T+1}'); a(f's_and_b32 s{self.S_KP}, s{self.S_KP}, {7 if self.o("rot", 1) else 0}')
        self.vW = R.alloc('v', 'vW', 4, align=1)
        a(f's_mov_b32 s{T}, 0x12492493'); a(f's_lshl_b32 s{T+1}, s{self.S_W}, 6')
        for j in range(4):
            a(f'v_add_u32 v{t0}, s{T+1}, v{L}')
            if j: a(f'v_add_u32 v{t0}, {256*j}, v{t0}')
            a(f'v_mul_hi_u32 v{t1}, v{t0}, s{T}')
            a(f'v_mul_u32_u24 v{t2}, 14, v{t1}'); a(f'v_sub_u32 v{t0}, v{t0}, v{t2}')
            a(f'v_bfe_u32 v{t2}, v{t1}, 3, 1'); a(f'v_lshlrev_b32 v{t2}, 2, v{t2}'); a(f'v_xor_b32 v{t1}, v{t1}, v{t2}')
            a(f'v_mul_u32_u24 v{t1}, 3584, v{t1}'); a(f'v_lshl_add_u32 v{self.vW+j}, v{t0}, 4, v{t1}')
        a(f's_mul_i32 s{self.S_WB}, s{self.S_NT}, 224')
        a(f's_lshl_b32 s81, s{self.S_W}, 10')
        a(f's_lshl_b32 s64, s{self.S_W}, 12')
        a(f's_mov_b32 s66, s64')
        a(f's_cmp_lt_u32 s{self.S_W}, 2'); a(f's_cselect_b64 s[{self.S_M3}:{self.S_M3+1}], -1, 0')
        self.vBR = R.alloc('v', 'vBR', 4, align=1)
        a(f'v_and_b32 v{t0}, 7, v{L}'); a(f'v_lshrrev_b32 v{t1}, 4, v{L}')
        a(f'v_xor_b32 v{t1}, v{t1}, v{t0}'); a(f'v_lshlrev_b32 v{t1}, 4, v{t1}'); a(f'v_lshl_add_u32 v{t1}, v{t0}, 7, v{t1}')
        a(f'v_bfe_u32 v{t2}, v{L}, 3, 1'); a(f'v_lshl_add_u32 v{t1}, v{t2}, 10, v{t1}')
        a(f'v_add_u32 v{self.vBR}, s66, v{t1}'); a(f'v_xor_b32 v{self.vBR+1}, 64, v{self.vBR}')
        a(f'v_add_u32 v{self.vBR+2}, {2*SLOT}, v{self.vBR}'); a(f'v_add_u32 v{self.vBR+3}, {2*SLOT}, v{self.vBR+1}')
        self.vA = R.alloc('v', 'vA', 4, align=1); self.vAC = R.alloc('v', 'vAC', 4, align=1)
        a(f'v_lshrrev_b32 v{t0}, 4, v{L}'); a(f'v_bfe_u32 v{t1}, v{L}, 2, 2')
        a(f'v_and_b32 v{t2}, 1, v{t0}'); a(f'v_lshlrev_b32 v{t2}, 2, v{t2}'); a(f'v_xor_b32 v{t1}, v{t1}, v{t2}')
        a(f'v_lshl_add_u32 v{t1}, v{t0}, 3, v{t1}'); a(f'v_xor_b32 v{t2}, 4, v{t1}')
        a(f'v_and_b32 v{t0}, 3, v{L}'); a(f'v_lshlrev_b32 v{t0}, 3, v{t0}'); a(f'v_add_u32 v{t0}, 16384, v{t0}')
        a(f'v_mul_u32_u24 v{t1}, 224, v{t1}'); a(f'v_add_u32 v{self.vA}, v{t1}, v{t0}')
        a(f'v_mul_u32_u24 v{t2}, 224, v{t2}'); a(f'v_add_u32 v{self.vA+1}, v{t2}, v{t0}')
        a(f'v_add_u32 v{self.vA+2}, {2*SLOT}, v{self.vA}'); a(f'v_add_u32 v{self.vA+3}, {2*SLOT}, v{self.vA+1}')
        a(f's_lshl_b32 s{T}, s{self.S_W}, 5')
        for j in range(4): a(f'v_add_u32 v{self.vAC+j}, s{T}, v{self.vA+j}')
        R.release('t0', 't1', 't2')

    S_KP, S_QB, S_WB = 98, 99, 100

    def slot_fill(self, kp):
        a = self.a; base = (kp & 3) * SLOT
        L = []
        def pre():
            a(f's_lshl_b32 s67, s{self.S_KP}, 7'); a(f's_add_u32 s76, s{self.S_QB}, s67')
            for j in range(1, 4): a(f's_add_u32 s{76+j}, s76, {8192*j}')
            a(f's_mul_i32 s67, s{self.S_KP}, {64*3584}'); a(f's_add_u32 s80, s{self.S_WB}, s67')
            a(f's_add_u32 s{self.S_KP}, s{self.S_KP}, 1'); a(f's_and_b32 s{self.S_KP}, s{self.S_KP}, 7')
        self.kp_issued = getattr(self, 'kp_issued', {})
        def q(j):
            self.kp_issued.setdefault(kp, []).append(('q', j))
            a(f's_add_u32 m0, s66, {base + j*1024}'); a(f's_nop 0')
            a(f'buffer_load_dwordx4 v{self.vQ}, {self.D(self.SRD_Q)}, s{76+j} offen {self.o("q_nt", "none")} lds', vm=f'kp{kp}')
        def w(j):
            self.kp_issued.setdefault(kp, []).append(('w', j))
            if j == 0: pre()
            a(f's_add_u32 m0, s81, {base + 16384 + j*4096}')
            if j == 3: a(f's_mov_b64 exec, s[{self.S_M3}:{self.S_M3+1}]')
            else: a('s_nop 0')
            a(f'buffer_load_dwordx4 v{self.vW+j}, {self.D(self.SRD_W1)}, s80 offen {self.o("w1_nt", "none")} lds', vm=f'kp{kp}')
            if j == 3: a('s_mov_b64 exec, -1')
        if self.o('wfirst', 0):
            for j in range(4): L.append(lambda j=j: w(j))
            for j in range(4): L.append(lambda j=j: q(j))
        else:
            for j in range(4):
                L.append(lambda j=j: w(j)); L.append(lambda j=j: q(j))
        return L

    def p0_compute(self):
        a, R, T, v = self.a, self.R, self.T, self.v
        L = self.vLANE
        t0 = R.alloc('v', 't0', 1); t1 = R.alloc('v', 't1', 1)
        WR = R.alloc('v', 'WR', 16); vKS = R.alloc('v', 'vKS', 1); vS = R.alloc('v', 'vS', 2)
        a(f's_lshl_b32 s{T}, s{self.S_W}, 9'); a(f's_add_u32 s{T}, s{T}, {L_SHK}')
        a(f'v_lshlrev_b32 v{vS}, 4, v{L}'); a(f'v_add_u32 v{vS}, s{T}, v{vS}')
        a(f'v_and_b32 v{vS+1}, 7, v{L}'); a(f'v_lshlrev_b32 v{vS+1}, 6, v{vS+1}'); a(f'v_add_u32 v{vS+1}, s{T}, v{vS+1}')
        a(f'v_and_b32 v{t0}, 7, v0'); a(f'v_lshrrev_b32 v{t1}, 3, v0'); a(f'v_sub_u32 v{t1}, 31, v{t1}')
        a(f'v_lshlrev_b32 v{vKS}, 2, v{t0}'); a(f'v_xor_b32 v{t1}, v{t1}, v{vKS}'); a(f'v_lshlrev_b32 v{t1}, 2, v{t1}')
        a(f'v_lshl_add_u32 v{t1}, v{t0}, 10, v{t1}'); a(f'v_add_u32 v{vKS}, {L_KVS}, v{t1}')
        a(f'v_cmp_gt_u32 vcc, 32, v{L}')
        a.wait_vm('kv')
        self.stamp('kv_landed')
        for f in getattr(self, 'burst_a', []): f()
        a('s_and_saveexec_b64 s[82:83], vcc')
        a(f'ds_write_b128 v{vS}, {rr("v", self.SHR, 4)}', lg='x')
        a('s_mov_b64 exec, s[82:83]')
        for j in range(4): a(f'ds_read_b128 {rr("v", WR+4*j, 4)}, v{vS+1} offset:{16*j}', lg='wr')
        KP = R.alloc('v', 'KP', 40); WP = R.alloc('v', 'WP', 8); VP = R.alloc('v', 'VP', 16); RS = R.alloc('v', 'RS', 4); OD = R.alloc('v', 'OD', 2)
        for c in range(4):
            for j in range(5):
                v(f'v_lshlrev_b32 v{KP+10*c+2*j}, 16, v{self.KR+4*j+c}'); v(f'v_and_b32 v{KP+10*c+2*j+1}, 0xffff0000, v{self.KR+4*j+c}')
            for j in range(2):
                v(f'v_lshlrev_b32 v{VP+4*c+2*j}, 16, v{self.VR+4*j+c}'); v(f'v_and_b32 v{VP+4*c+2*j+1}, 0xffff0000, v{self.VR+4*j+c}')
            if c == 0: a.wait_lg('wr')
            for e in range(2):
                d0, d1 = WR + 4 * c + 2 * e, WR + 4 * c + 2 * e + 1
                v(f'v_lshlrev_b32 v{WP+0+e}, 16, v{d0}'); v(f'v_and_b32 v{WP+2+e}, 0xffff0000, v{d0}')
                v(f'v_lshlrev_b32 v{WP+4+e}, 16, v{d1}'); v(f'v_and_b32 v{WP+6+e}, 0xffff0000, v{d1}')
            kp_, vp_ = KP + 10 * c, VP + 4 * c
            for o in range(2):
                r = rr('v', RS + 2 * o, 2)
                v(f'v_pk_mul_f32 {r}, {rr("v", WP+6, 2)}, {rr("v", kp_+2*(o+0), 2)}')
            for tt, wp in ((1, 4), (2, 2), (3, 0)):
                for o in range(2):
                    r = rr('v', RS + 2 * o, 2)
                    v(f'v_pk_fma_f32 {r}, {rr("v", WP+wp, 2)}, {rr("v", kp_+2*(o+tt), 2)}, {r}')
            for o in range(2):
                r = rr('v', RS + 2 * o, 2)
                v(f'v_pk_mul_f32 {r}, {r}, {rr("v", vp_+2*o, 2)}')
            for e in range(2):
                v(f'v_cvt_pk_bf16_f32 v{OD+e}, v{RS+2+e}, v{RS+e}')
            for e in range(2):
                a(f'ds_write_b32 v{vKS}, v{OD+e} offset:{(2*c+e)*128}', lg='kvs')
        R.release('KP', 'WP', 'VP', 'RS', 'OD', 'WR', 'KR', 'VR', 'SHR', 'vKS', 'vS')
        self.flush_fill()
        KO = R.alloc('v', 'KO', 8); vr = R.alloc('v', 'vr', 2)
        a(f'v_lshrrev_b32 v{t0}, 3, v0'); a(f'v_and_b32 v{t1}, 7, v0')
        a(f'v_lshrrev_b32 v{vr}, 3, v{t0}'); a(f'v_xor_b32 v{vr}, v{vr}, v{t1}'); a(f'v_lshlrev_b32 v{vr}, 4, v{vr}')
        a(f'v_lshl_add_u32 v{vr}, v{t0}, 7, v{vr}'); a(f'v_add_u32 v{vr}, {L_KVS}, v{vr}')
        a(f'v_xor_b32 v{vr+1}, 64, v{vr}')
        a(f'v_lshlrev_b32 v{t0}, 12, v{t0}'); a(f'v_lshl_add_u32 v{t0}, v{t1}, 4, v{t0}')
        a(f's_lshl_b32 s{T}, s{self.S_X}, 18'); a(f's_lshl_b32 s{T+1}, s{self.S_I}, 7'); a(f's_sub_u32 s{T}, s{T}, s{T+1}')
        a(f's_add_u32 s82, s{T}, {WS_KVT + 3968}'); a(f's_add_u32 s83, s82, {32*4096}')
        a('s_waitcnt lgkmcnt(0)')
        a('s_barrier')
        self.stamp('kv_computed')
        self.burst_b_pending = True
        a(f'ds_read_b128 {rr("v", KO, 4)}, v{vr}', lg='ko'); a(f'ds_read_b128 {rr("v", KO+4, 4)}, v{vr+1} offset:4096', lg='ko')
        for f in getattr(self, 'burst_b', []): f()
        self.stamp('burst_b')
        WO = R.alloc('v', 'WO', 16)
        a('s_mov_b32 s84, 0x05040100'); a('s_mov_b32 s85, 0x07060302')
        a.wait_vm('w2')
        for dl in range(4):
            for p in range(4):
                lo, hi = self.W2R + 2 * (2 * p) + (dl >> 1), self.W2R + 2 * (2 * p + 1) + (dl >> 1)
                a(f'v_perm_b32 v{WO+4*dl+p}, v{hi}, v{lo}, s{84 + (dl & 1)}')
            if dl == 0:
                a('s_waitcnt lgkmcnt(0)')
                a(f'buffer_store_dwordx4 {rr("v", KO, 4)}, v{t0}, {self.D(self.SRD_WS)}, s82 offen {self.o("p0_sc", "sc1")}', vm='p0st')
                a(f'buffer_store_dwordx4 {rr("v", KO+4, 4)}, v{t0}, {self.D(self.SRD_WS)}, s83 offen {self.o("p0_sc", "sc1")}', vm='p0st')
        a(f's_mul_i32 s{T}, s{self.S_X}, {TILE_B}'); a(f's_lshl_b32 s{T+1}, s94, 12'); a(f's_add_u32 s{T}, s{T}, s{T+1}')
        a(f's_add_u32 s{T}, s{T}, {WS_W2F}')
        a(f'v_lshlrev_b32 v{t1}, 4, v{L}')
        a('s_mov_b64 exec, s[92:93]')
        for dl in range(4):
            a(f'buffer_store_dwordx4 {rr("v", WO+4*dl, 4)}, v{t1}, {self.D(self.SRD_WS)}, s{T} offen offset:{dl*1024} {self.o("p0_sc", "sc1")}', vm='p0st')
        a('s_mov_b64 exec, -1')
        R.release('W2R', 'vr')
        self.late_release = ['KO', 'WO', 't0', 't1']
        self.stamp('p0_done')
        for f in getattr(self, 'burst_c', []): f()

    def cnt_addr(self, dst, kind, src):
        a = self.a
        base = {'A': 0, 'H': 2, 'Y': 6}[kind]
        a(f's_and_b32 s{dst}, s{src}, 3'); a(f's_lshl_b32 s{dst}, s{dst}, 4'); a(f's_lshr_b32 s67, s{src}, 2')
        a(f's_add_u32 s{dst}, s{dst}, s67'); a(f's_add_u32 s{dst}, s{dst}, {base}'); a(f's_lshl_b32 s{dst}, s{dst}, 2')

    def signal(self, kind, src):
        a, R = self.a, self.R
        self.cnt_addr(75, kind, src)
        t = R.alloc('v', 'sig', 2)
        a(f'v_mov_b32 v{t}, s75'); a(f'v_mov_b32 v{t+1}, 1')
        a(f's_cmp_eq_u32 s{self.S_W}, 0'); a('s_cselect_b64 exec, 1, 0')
        a(f'global_atomic_add v{t}, v{t+1}, s[{self.S_DBG}:{self.S_DBG+1}] sc1', vm='sig')
        a('s_mov_b64 exec, -1')
        R.release('sig')

    def poll_issue(self, name, items):
        a, R = self.a, self.R
        t = R.alloc('v', 'poll_' + name, 2)
        for j, (kind, src) in enumerate(items):
            self.cnt_addr(75, kind, src)
            if j == 0: a(f'v_mov_b32 v{t}, s75')
            else: a(f'v_writelane_b32 v{t}, s75, {j}')
        mask = (1 << len(items)) - 1
        setattr(self, 'poll_' + name, (t, mask))
        a(f's_cmp_eq_u32 s{self.S_W}, 0'); a(f's_cselect_b64 exec, {mask}, 0')
        a(f'global_load_dword v{t+1}, v{t}, s[{self.S_DBG}:{self.S_DBG+1}] sc1', vm='poll_' + name)
        a('s_mov_b64 exec, -1')

    def poll_check(self, name, target):
        a, R = self.a, self.R
        t, mask = getattr(self, 'poll_' + name)
        a.wait_vm('poll_' + name)
        a(f's_cmp_lg_u32 s{self.S_W}, 0'); a(f's_cbranch_scc1 L_pk_{name}')
        a(f's_mov_b32 s67, 0')
        a.label(f'L_pl_{name}')
        a.raw(f'    v_cmp_le_u32 vcc, {target}, v{t+1}')
        a.raw('    s_nop 1')
        a.raw(f'    s_and_b32 s75, vcc_lo, {mask}')
        a.raw(f'    s_cmp_eq_u32 s75, {mask}')
        a.raw(f'    s_cbranch_scc1 L_pk_{name}')
        a.raw('    s_sleep 4')
        a.raw(f'    s_mov_b64 exec, {mask}')
        a.raw(f'    global_load_dword v{t+1}, v{t}, s[{self.S_DBG}:{self.S_DBG+1}] sc1')
        a.raw('    s_mov_b64 exec, -1')
        a.raw('    s_waitcnt vmcnt(0)')
        a.raw('    s_add_u32 s67, s67, 1')
        a.raw('    s_cmp_lt_u32 s67, 0x40000')
        a.raw(f'    s_cbranch_scc1 L_pl_{name}')
        a.label(f'L_pk_{name}')
        R.release('poll_' + name)

    def g1_main(self):
        a, R, T = self.a, self.R, self.T
        self.ACC = R.alloc('v', 'ACC', 56); self.SX = R.alloc('v', 'SX', 8); self.GR = R.alloc('v', 'GR', 8); self.CL = R.alloc('v', 'CL', 8)
        AF = R.alloc('v', 'AF', 56); AC = R.alloc('v', 'AC', 16); BF = R.alloc('v', 'BF', 16); ON = R.alloc('a', 'ONES', 4)
        t0 = R.alloc('v', 'tone', 1)
        a(f'v_mov_b32 v{t0}, 0x3f803f80')
        for j in range(4): a(f'v_accvgpr_write_b32 a{ON+j}, v{t0}')
        R.release('tone')
        def af(b, t): return AF + b * 28 + t * 4
        def ac(b, c): return AC + b * 8 + c * 4
        def bf(b, Tt): return BF + b * 8 + Tt * 4
        def reads(ks):
            b = ks & 1; kp = ks >> 1; p = ks & 1; sl = kp & 3
            hi = 2 if sl >= 2 else 0; off = (sl & 1) * SLOT
            L = [f'ds_read_b128 {rr("v", bf(b, Tt), 4)}, v{self.vBR+hi+p} offset:{off + Tt*2048}' for Tt in range(2)]
            for t in range(7):
                for hh in range(2):
                    L.append(f'ds_read_b64_tr_b16 {rr("v", af(b, t)+2*hh, 2)}, v{self.vA+hi+hh} offset:{off + p*7168 + t*32}')
            for c in range(2):
                for hh in range(2):
                    L.append(f'ds_read_b64_tr_b16 {rr("v", ac(b, c)+2*hh, 2)}, v{self.vAC+hi+hh} offset:{off + p*7168 + c*128}')
            return L
        s0 = self.o('g1_vm0', 0)
        vq = []
        for kp in range(self.pre_slots, 8):
            earliest = max(s0, 2 * (kp - 3) - 1 if kp >= 4 else 0)
            vq += [(earliest, f) for f in self.slot_fill(kp)]
        vq += [(0, f) for f in self.hk_fill()]
        self.w2f = self.w2_fill()
        w2_step = self.o('w2_step', 11)
        n_g1 = self.o('w2_in_g1', 22)
        vq += [(w2_step, f) for f in self.w2f[:n_g1]]
        self.w2f = self.w2f[n_g1:]
        budget = [int(x) for x in self.o('g1_vm', '5,5,5,5,5,5,4,4,4,4,4,4,4,4,4,4').split(',')]
        a.wait_vm('kp0')
        a('s_barrier')
        self.stamp('g1_first')
        for x in reads(0): a(x, lg='x')
        a('s_waitcnt lgkmcnt(0)')
        for ks in range(16):
            ab = ks & 1
            if ks & 1 and ks + 1 < 16:
                j = (ks + 1) >> 1
                assert len(self.kp_issued.get(j, [])) == 8, (ks, j)
                a.wait_vm(f'kp{j}') if j != 3 else a.wait_vm(f'kp{j}', 'p0st')
                if ks == w2_step: self.poll_check('A', 32)
                a('s_barrier')
                if j == 3:
                    self.signal('A', self.S_X)
                    R.release(*self.late_release)
            if ks == self.o('pollA_step', 9):
                self.poll_issue('A', [('A', self.S_X), ('A', self.S_DT)])
            rd = reads(ks + 1) if ks + 1 < 16 else []
            first = ks == 0
            mf = []
            for Tt in range(2):
                d = rr('v', self.GR + Tt * 4, 4)
                mf.append(f'v_mfma_f32_16x16x32_bf16 {d}, {rr("v", bf(ab, Tt), 4)}, {rr("v", bf(ab, Tt), 4)}, {"0" if first else d}')
            for t in range(7):
                for Tt in range(2):
                    d = rr('v', self.ACC + (t * 2 + Tt) * 4, 4)
                    mf.append(f'v_mfma_f32_16x16x32_bf16 {d}, {rr("v", af(ab, t), 4)}, {rr("v", bf(ab, Tt), 4)}, {"0" if first else d}')
            for Tt in range(2):
                d = rr('v', self.SX + Tt * 4, 4)
                mf.append(f'v_mfma_f32_16x16x32_bf16 {d}, {rr("a", ON, 4)}, {rr("v", bf(ab, Tt), 4)}, {"0" if first else d}')
            for c in range(2):
                d = rr('v', self.CL + c * 4, 4)
                mf.append(f'v_mfma_f32_16x16x32_bf16 {d}, {rr("v", ac(ab, c), 4)}, {rr("a", ON, 4)}, {"0" if first else d}')
            nv = 0
            lead = self.o('g1_lead', 2)
            ri = 0
            for j, m in enumerate(mf):
                a(m)
                k = 2 if j < lead else 1
                while k > 0 and ri < len(rd):
                    a(rd[ri], lg='x'); ri += 1; k -= 1
                if j % 4 == 1 and nv < budget[ks] and vq and vq[0][0] <= ks:
                    vq.pop(0)[1](); nv += 1
            while ri < len(rd): a(rd[ri], lg='x'); ri += 1
            a('s_waitcnt lgkmcnt(0)')
            if self.o('stamp_g1', 0): self.stamp(f'g1s{ks}')
        for _, f in vq: f()
        R.release('AF', 'AC', 'BF', 'ONES', 'vQ', 'vW', 'vBR', 'vA', 'vAC', 'vHK')
        self.stamp('g1_done')

    def hc_fill(self):
        a, R = self.a, self.R
        O = R.alloc('v', 'O', 12); vH = R.alloc('v', 'vH', 2)
        L = self.vLANE
        out = []
        def addr():
            a(f'v_lshlrev_b32 v{vH}, 4, v0'); a(f'v_add_u32 v{vH}, {L_HC + 64}, v{vH}')
            a(f'v_and_b32 v{O}, 3, v{L}'); a(f'v_lshrrev_b32 v{O+1}, 2, v{L}')
            a(f'v_mul_u32_u24 v{O+1}, 16640, v{O+1}'); a(f'v_lshl_add_u32 v{O}, v{O}, 4, v{O+1}'); a(f'v_add_u32 v{vH+1}, {L_HC}, v{O}')
            a.wait_vm('hk')
        out.append(addr)
        def copies(d, base, va):
            def c3(): a(f'ds_write_b128 v{va}, {rr("v", d+2, 4)} offset:{base + 3*4160}', lg='hc')
            def c0():
                for j in range(4): a(f'v_alignbit_b32 v{O+j}, v{d+j+1}, v{d+j}, 16')
                a(f'ds_write_b128 v{va}, {rr("v", O, 4)} offset:{base}', lg='hc')
            def c2():
                for j in range(4): a(f'v_alignbit_b32 v{O+4+j}, v{d+j+2}, v{d+j+1}, 16')
                a(f'ds_write_b128 v{va}, {rr("v", O+4, 4)} offset:{base + 2*4160}', lg='hc')
            def c1():
                for j in range(4): a(f'v_mov_b32 v{O+8+j}, v{d+j+1}')
                a(f'ds_write_b128 v{va}, {rr("v", O+8, 4)} offset:{base + 4160}', lg='hc')
            return [c3, c0, c2, c1]
        for ch in range(2): out += copies(self.HR + 8 * ch, ch * 16640, vH)
        def extra():
            d = self.HR
            a('s_waitcnt lgkmcnt(0)')
            a(f'v_cmp_gt_u32 vcc, 8, v0'); a('s_and_saveexec_b64 s[82:83], vcc')
            a('s_cbranch_execz L_hx_skip')
            for j in range(4): a(f'v_mov_b32 v{d+j}, 0')
            a(f'v_mov_b32 v{d+4}, v{self.HX}'); a(f'v_mov_b32 v{d+5}, v{self.HX+1}')
            for f in copies(d, 0, vH + 1): f()
            a.label('L_hx_skip')
            a('s_mov_b64 exec, s[82:83]')
            a('s_waitcnt lgkmcnt(0)')
            R.release('O', 'vH', 'HR', 'HX')
        out.append(extra)
        return out

    def conv_zero(self):
        a, R = self.a, self.R
        z = R.alloc('v', 'z', 4); t = R.alloc('v', 'zt', 1)
        for j in range(4): a(f'v_mov_b32 v{z+j}, 0')
        a(f'v_lshlrev_b32 v{t}, 4, v0'); a(f'v_add_u32 v{t}, {L_UR + 5120}, v{t}')
        a(f'v_cmp_gt_u32 vcc, 155, v0'); a('s_and_saveexec_b64 s[82:83], vcc')
        a(f'ds_write_b128 v{t}, {rr("v", z, 4)}', lg='x'); a(f'ds_write_b128 v{t}, {rr("v", z, 4)} offset:7600', lg='x')
        a('s_mov_b64 exec, s[82:83]')
        self.zrel = ['z', 'zt']

    def ur_loads(self):
        a, R, T = self.a, self.R, self.T
        self.URR = R.alloc('v', 'URR', 8); t = R.alloc('v', 'urt', 1)
        a(f's_lshl_b32 s{T}, s{self.S_X}, 18'); a(f's_lshl_b32 s{T+1}, s{self.S_I}, 13'); a(f's_add_u32 s{T}, s{T}, s{T+1}')
        a(f's_add_u32 s{T+1}, s{T}, 4096')
        a(f'v_lshlrev_b32 v{t}, 4, v0')
        a(f'buffer_load_dwordx4 {rr("v", self.URR, 4)}, v{t}, {self.D(self.SRD_WS)}, s{T} offen sc1', vm='ur')
        a(f'buffer_load_dwordx4 {rr("v", self.URR+4, 4)}, v{t}, {self.D(self.SRD_WS)}, s{T+1} offen sc1', vm='ur')
        R.release('urt')

    def g1_epilogue(self):
        a, R, T, v = self.a, self.R, self.T, self.v
        L = self.vLANE
        t = R.alloc('v', 't', 8)
        a(f'v_lshrrev_b32 v{t}, 4, v{L}'); a(f'v_lshlrev_b32 v{t}, 4, v{t}')
        a(f's_lshl_b32 s{T}, s{self.S_W}, 6'); a(f's_add_u32 s{T}, s{T}, {L_COL}')
        a(f'v_add_u32 v{t+1}, s{T}, v{t}')
        a(f'v_and_b32 v{t+2}, 15, v{L}'); a(f'v_cmp_eq_u32 vcc, 0, v{t+2}')
        a(f'v_and_b32 v{t+3}, 3, v{L}')
        a(f'v_cmp_eq_u32 s[82:83], 1, v{t+3}'); a(f'v_cmp_eq_u32 s[84:85], 2, v{t+3}'); a(f'v_cmp_eq_u32 s[86:87], 3, v{t+3}')
        a(f'v_lshrrev_b32 v{t+4}, 2, v{t+2}'); a(f'v_lshl_add_u32 v{t+4}, v{t+4}, 4, v{t+2}'); a(f'v_lshlrev_b32 v{t+4}, 2, v{t+4}')
        for Tt in range(2):
            g = self.GR + 4 * Tt
            a(f'v_cndmask_b32 v{t+5}, v{g}, v{g+1}, s[82:83]'); a(f'v_cndmask_b32 v{t+5}, v{t+5}, v{g+2}, s[84:85]'); a(f'v_cndmask_b32 v{t+5}, v{t+5}, v{g+3}, s[86:87]')
            a(f'ds_bpermute_b32 v{t+6+Tt}, v{t+4}, v{t+5}', lg='bp')
        a('s_mov_b64 exec, vcc')
        a(f'ds_write_b128 v{t+1}, {rr("v", self.CL, 4)}', lg='x')
        a(f'ds_write_b128 v{t+1}, {rr("v", self.CL+4, 4)} offset:256', lg='x')
        a('s_mov_b64 exec, -1')
        self.ur_loads()
        for f in self.w2f[:self.o('w2_in_e1', 4)]: f()
        self.w2f = self.w2f[self.o('w2_in_e1', 4):]
        a('s_waitcnt lgkmcnt(0)')
        a('s_barrier')
        self.stamp('e1_bar')
        CB = R.alloc('v', 'CB', 28)
        a(f'v_add_u32 v{t+1}, {L_COL}, v{t}')
        for tt in range(7): a(f'ds_read_b128 {rr("v", CB+4*tt, 4)}, v{t+1} offset:{tt*64}', lg='cb')
        self.conv_zero()
        NM = R.alloc('v', 'NM', 4); K1 = R.alloc('v', 'K1', 4); LL = R.alloc('v', 'LL', 2); RI = R.alloc('v', 'RI', 2)
        a('s_mov_b32 s82, 0x3b000000'); a('s_mov_b32 s83, 0x3727c5ac'); a('s_mov_b32 s85, 0xbfb8aa3b')
        a(f'v_mov_b32 v{LL}, s85'); a(f'v_mov_b32 v{LL+1}, s85')
        for Tt in range(2):
            mean, ex2, tmp = t, t + 1, t + 2
            a(f'v_mul_f32 v{mean}, s82, v{self.SX+4*Tt}'); a(f'v_mul_f32 v{ex2}, s82, v{t+6+Tt}')
            a(f'v_fma_f32 v{ex2}, -v{mean}, v{mean}, v{ex2}'); a(f'v_max_f32 v{ex2}, 0, v{ex2}')
            a(f'v_cvt_pk_bf16_f32 v{tmp}, v{mean}, v{ex2}')
            a(f'v_lshlrev_b32 v{mean}, 16, v{tmp}'); a(f'v_and_b32 v{ex2}, 0xffff0000, v{tmp}')
            a(f'v_add_f32 v{ex2}, s83, v{ex2}'); a(f'v_cvt_pk_bf16_f32 v{tmp}, v{ex2}, v{ex2}'); a(f'v_lshlrev_b32 v{ex2}, 16, v{tmp}')
            a(f'v_sqrt_f32 v{ex2}, v{ex2}'); a(f'v_cvt_pk_bf16_f32 v{tmp}, v{ex2}, v{ex2}'); a(f'v_lshlrev_b32 v{ex2}, 16, v{tmp}')
            a(f'v_rcp_f32 v{RI+Tt}, v{ex2}')
            a(f'v_sub_f32 v{NM+2*Tt}, 0, v{mean}'); a(f'v_sub_f32 v{NM+2*Tt+1}, 0, v{mean}')
            a(f'v_mul_f32 v{K1+2*Tt}, s85, v{RI+Tt}'); a(f'v_mul_f32 v{K1+2*Tt+1}, s85, v{RI+Tt}')
        R.release(*self.zrel)
        vs = R.alloc('v', 'vs', 4)
        a(f'v_lshlrev_b32 v{vs}, 3, v{L}')
        a(f's_lshl_b32 s{T}, s{self.S_MT}, 10'); a(f's_lshl_b32 s{T+1}, s{self.S_W}, 8'); a(f's_add_u32 s{T}, s{T}, s{T+1}'); a(f's_add_u32 s{T}, s{T}, {WS_STAT}')
        a(f's_cmp_eq_u32 s{self.S_NT}, 0'); a('s_cselect_b64 exec, 0xffff, 0')
        for Tt in range(2):
            a(f'v_sub_f32 v{vs+2}, 0, v{NM+2*Tt}'); a(f'v_mov_b32 v{vs+3}, v{RI+Tt}')
            a(f'buffer_store_dwordx2 {rr("v", vs+2, 2)}, v{vs}, {self.D(self.SRD_WS)}, s{T} offen offset:{Tt*128} sc1', vm='hst')
            a('s_nop 1')
        a('s_mov_b64 exec, -1')
        R.release('vs', 'RI')
        a(f's_lshr_b32 s{T}, s{self.S_W}, 1'); a(f's_lshl_b32 s{T+1}, s{self.S_MT}, 1'); a(f's_add_u32 s{T}, s{T}, s{T+1}')
        a(f's_mul_i32 s{T}, s{T}, {TILE_B}'); a(f's_add_u32 s{T}, s{T}, {WS_HF}')
        a(f's_and_b32 s{T+1}, s{self.S_W}, 1'); a(f's_lshl_b32 s{T+1}, s{T+1}, 11'); a(f's_add_u32 s{T}, s{T}, s{T+1}')
        a(f's_lshr_b32 s{T+1}, s{self.S_NT}, 1'); a(f's_mul_i32 s{T+1}, s{T+1}, {7*4096}'); a(f's_add_u32 s{T}, s{T}, s{T+1}')
        a(f's_and_b32 s{T+1}, s{self.S_NT}, 1')
        a(f's_mul_i32 s64, s{T+1}, {3*4096}'); a(f's_add_u32 s86, s{T}, s64')
        a(f's_lshl_b32 s64, s{T+1}, 9'); a(f's_add_u32 s87, s{T}, s64'); a(f's_add_u32 s87, s87, {6*4096}')
        v8 = R.alloc('v', 'v8', 1)
        a(f'v_lshlrev_b32 v{v8}, 3, v{L}')
        v16 = self.vL16
        a.wait_lg('cb')
        Z = R.alloc('v', 'Z', 8); E = R.alloc('v', 'E', 8); HP = R.alloc('v', 'HP', 8)
        self.conv_fill = self.w2f
        self.fq = self.hc_fill(); self.f_every = self.o('e1_every', 24); self.f_cnt = 0
        flip = [0]
        def silu_tiles(tiles, Tt):
            dst = HP + 4 * flip[0]; flip[0] ^= 1
            n = len(tiles)
            for u, tt in enumerate(tiles):
                for hlf in range(2):
                    acc = self.ACC + (tt * 2 + Tt) * 4 + 2 * hlf
                    v(f'v_pk_fma_f32 {rr("v", Z+4*u+2*hlf, 2)}, {rr("v", CB+4*tt+2*hlf, 2)}, {rr("v", NM+2*Tt, 2)}, {rr("v", acc, 2)}')
            for u in range(2 * n): v(f'v_pk_mul_f32 {rr("v", Z+2*u, 2)}, {rr("v", Z+2*u, 2)}, {rr("v", K1+2*Tt, 2)}')
            for u in range(4 * n): v(f'v_exp_f32 v{E+u}, v{Z+u}')
            for u in range(2 * n): v(f'v_pk_fma_f32 {rr("v", E+2*u, 2)}, {rr("v", E+2*u, 2)}, {rr("v", LL, 2)}, {rr("v", LL, 2)}')
            for u in range(4 * n): v(f'v_rcp_f32 v{E+u}, v{E+u}')
            for u in range(2 * n): v(f'v_pk_mul_f32 {rr("v", Z+2*u, 2)}, {rr("v", Z+2*u, 2)}, {rr("v", E+2*u, 2)}')
            for u in range(2 * n): v(f'v_cvt_pk_bf16_f32 v{dst+u}, v{Z+2*u}, v{Z+2*u+1}')
            return dst
        for m in range(3):
            for Tt in range(2):
                dst = silu_tiles((2 * m, 2 * m + 1), Tt)
                a(f's_add_u32 s{T}, s86, {m*4096}')
                a(f'buffer_store_dwordx4 {rr("v", dst, 4)}, v{v16}, {self.D(self.SRD_WS)}, s{T} offen offset:{Tt*1024} {self.o("hst_sc", "sc1")}', vm='hst')
        for Tt in range(2):
            dst = silu_tiles((6,), Tt)
            a(f'buffer_store_dwordx2 {rr("v", dst, 2)}, v{v8}, {self.D(self.SRD_WS)}, s87 offen offset:{Tt*1024} {self.o("hst_sc", "sc1")}', vm='hst')
        self.flush_fill(); self.f_every = 0
        R.release('t', 'NM', 'K1', 'LL', 'CB', 'v8', 'Z', 'E', 'ACC', 'SX', 'GR', 'CL')
        self.hp_rel = ['HP']
        self.stamp('e1_done')

    def conv(self):
        a, R, T = self.a, self.R, self.T
        L = self.vLANE
        t = R.alloc('v', 't', 6)
        a(f'v_lshrrev_b32 v{t}, 2, v0'); a(f'v_mul_u32_u24 v{t}, 80, v{t}'); a(f'v_and_b32 v{t+1}, 3, v0'); a(f'v_lshl_add_u32 v{t}, v{t+1}, 4, v{t}')
        a.wait_vm('ur')
        a(f'ds_write_b128 v{t}, {rr("v", self.URR, 4)}', lg='x'); a(f'ds_write_b128 v{t}, {rr("v", self.URR+4, 4)} offset:7600', lg='x')
        S_CH, S_ROLE = 86, 87
        a(f's_lshr_b32 s{S_CH}, s{self.S_W}, 1'); a(f's_and_b32 s{S_ROLE}, s{self.S_W}, 1')
        vHA = R.alloc('v', 'vHA', 1); vUB = R.alloc('v', 'vUB', 2); vUE = R.alloc('v', 'vUE', 1)
        a(f'v_and_b32 v{t+1}, 3, v{L}'); a(f'v_mul_u32_u24 v{t+1}, 4160, v{t+1}')
        a(f'v_bfe_u32 v{t+2}, v{L}, 2, 3'); a(f'v_lshl_add_u32 v{t+1}, v{t+2}, 3, v{t+1}')
        a(f'v_lshrrev_b32 v{t+2}, 5, v{L}'); a(f'v_lshl_add_u32 v{t+1}, v{t+2}, 4, v{t+1}')
        a(f's_mul_i32 s{T}, s{S_CH}, 16640'); a(f's_lshl_b32 s{T+1}, s{S_ROLE}, 10'); a(f's_add_u32 s{T}, s{T}, s{T+1}'); a(f's_add_u32 s{T}, s{T}, {L_HC}')
        a(f'v_add_u32 v{vHA}, s{T}, v{t+1}')
        a(f'v_and_b32 v{t+1}, 31, v{L}'); a(f'v_sub_u32 v{t+1}, 63, v{t+1}'); a(f'v_mul_u32_u24 v{t+1}, 80, v{t+1}')
        a(f's_mul_i32 s{T}, s{S_CH}, 7600')
        a(f'v_add_u32 v{t+1}, s{T}, v{t+1}')
        a(f's_mul_i32 s{T+1}, s{S_ROLE}, 2560')
        a(f'v_lshlrev_b32 v{t+3}, 3, v{t+2}'); a(f'v_sub_u32 v{t+3}, 8, v{t+3}'); a(f'v_add_u32 v{t+3}, v{t+3}, v{t+1}'); a(f'v_subrev_u32 v{vUE}, s{T+1}, v{t+3}')
        a(f'v_lshl_add_u32 v{t+1}, v{t+2}, 4, v{t+1}')
        a(f's_mul_i32 s{T+1}, s{S_ROLE}, 1280')
        a(f'v_add_u32 v{vUB}, s{T+1}, v{t+1}'); a(f'v_subrev_u32 v{vUB+1}, 2560, v{vUB}')
        a('s_waitcnt lgkmcnt(0)')
        a('s_barrier')
        self.stamp('conv_start')
        R.release('URR')
        Y = R.alloc('v', 'Y', 32)
        NB = 3
        FR = R.alloc('v', 'FR', 20 * NB)
        def fr(b, j): return FR + b * 20 + 4 * j
        def reads(j):
            b = j % NB
            oa, ob = j * 32, (j >> 1) * 80 + (j & 1) * 32
            oa2, ob2 = oa + 2048, ob + 2560
            return [f'ds_read_b64 {rr("v", fr(b, 0), 2)}, v{vHA} offset:{oa}',
                    f'ds_read_b64 {rr("v", fr(b, 0)+2, 2)}, v{vHA} offset:{oa+8}',
                    f'ds_read_b128 {rr("v", fr(b, 1), 4)}, v{vUB} offset:{ob}',
                    f'ds_read_b128 {rr("v", fr(b, 2), 4)}, v{vUB+1} offset:{ob}',
                    f'ds_read_b64 {rr("v", fr(b, 3), 2)}, v{vHA} offset:{oa2}',
                    f'ds_read_b64 {rr("v", fr(b, 3)+2, 2)}, v{vHA} offset:{oa2+8}',
                    f'ds_read_b128 {rr("v", fr(b, 4), 4)}, v{vUB+1} offset:{ob2}']
        for j in range(2):
            for x in reads(j): a(x, lg=f'c{j}')
        fill = list(self.conv_fill)
        for j in range(32):
            b = j % NB
            if j == self.o('hsig_it', 10):
                a.wait_vm('hst'); a('s_barrier'); self.signal('H', self.S_MT); R.release(*self.hp_rel)
                self.stamp('h_signaled')
            if j == self.o('pollH_it', 24):
                a(f's_lshr_b32 s64, s{self.S_MT64}, 1')
                self.poll_issue('H', [('H', 64)])
            a.wait_lg(f'c{j}')
            nxt = reads(j + 2) if j + 2 < 32 else []
            y0, y1 = rr('v', Y, 16), rr('v', Y + 16, 16)
            c0 = '0' if j == 0 else y0; c1 = '0' if j == 0 else y1
            mf = [f'v_mfma_f32_32x32x16_bf16 {y0}, {rr("v", fr(b, 0), 4)}, {rr("v", fr(b, 1), 4)}, {c0}',
                  f'v_mfma_f32_32x32x16_bf16 {y1}, {rr("v", fr(b, 0), 4)}, {rr("v", fr(b, 2), 4)}, {c1}',
                  f'v_mfma_f32_32x32x16_bf16 {y1}, {rr("v", fr(b, 3), 4)}, {rr("v", fr(b, 4), 4)}, {y1}']
            parts = [nxt[0:3], nxt[3:5], nxt[5:7]]
            for u, (m, pr) in enumerate(zip(mf, parts)):
                a(m)
                for x in pr: a(x, lg=f'c{j+2}')
                if u == 2 and fill and j >= self.o('cv_fill0', 4): fill.pop(0)()
                if u == 0 and fill and j >= self.o('cv_fill0', 4) and len(fill) > 32 - j: fill.pop(0)()
            if self.o('stamp_cv', 0) and j % 4 == 3: self.stamp(f'cv{j}')
        for f in fill: f()
        R.release('FR', 'vHA', 'vUB')
        self.stamp('conv_main_done')
        self.poll_check('H', 16)
        a('s_nop 7'); a('s_nop 3')
        a(f's_cmp_eq_u32 s{S_ROLE}, 0'); a('s_cbranch_scc1 L_noswap')
        for j in range(16): a(f'v_swap_b32 v{Y+j}, v{Y+16+j}')
        a.label('L_noswap')
        a(f's_lshl_b32 s{T}, s{self.S_W}, 12'); a(f's_add_u32 s{T}, s{T}, {L_RED}')
        a(f'v_lshlrev_b32 v{t}, 4, v{L}'); a(f'v_add_u32 v{t+1}, s{T}, v{t}')
        for j in range(4): a(f'ds_write_b128 v{t+1}, {rr("v", Y+16+4*j, 4)} offset:{j*1024}', lg='x')
        a(f's_xor_b32 s{T}, s{T}, 4096'); a(f'v_add_u32 v{t+1}, s{T}, v{t}')
        UU = R.alloc('v', 'UU', 8)
        for j in range(4): a(f'ds_read_b64 {rr("v", UU+2*j, 2)}, v{vUE} offset:{48-16*j}', lg='x')
        a('s_waitcnt lgkmcnt(0)')
        a('s_barrier')
        self.stamp('pollH')
        PT = R.alloc('v', 'PT', 16)
        for j in range(4): a(f'ds_read_b128 {rr("v", PT+4*j, 4)}, v{t+1} offset:{j*1024}', lg=f'pt{j}')
        self.HB = R.alloc('v', 'HB', 16 * self.NBH)
        for sg in range(self.NBH): self.h_load(sg)
        a(f'v_and_b32 v{t+2}, 31, v{L}'); a(f'v_mul_u32_u24 v{t+2}, 80, v{t+2}'); a(f'v_lshrrev_b32 v{t+3}, 5, v{L}'); a(f'v_lshl_add_u32 v{t+2}, v{t+3}, 3, v{t+2}')
        a(f's_mul_i32 s{T}, s{S_CH}, 5120'); a(f's_mul_i32 s{T+1}, s{S_ROLE}, 2560'); a(f's_add_u32 s{T}, s{T}, s{T+1}'); a(f's_add_u32 s{T}, s{T}, {L_YS}')
        a(f'v_add_u32 v{t+2}, s{T}, v{t+2}')
        DD = R.alloc('v', 'DD', 2); U4 = R.alloc('v', 'U4', 4); OP = R.alloc('v', 'OP', 8)
        a(f's_lshl_b32 s{T}, s95, 16'); a(f's_and_b32 s{T+1}, s95, 0xffff0000'); a(f's_cmp_eq_u32 s{S_CH}, 0'); a(f's_cselect_b32 s{T}, s{T}, s{T+1}')
        a(f'v_mov_b32 v{DD}, s{T}'); a(f'v_mov_b32 v{DD+1}, s{T}')
        for j in range(4):
            a.wait_lg(f'pt{j}')
            for h in range(2):
                r = rr('v', Y + 4 * j + 2 * h, 2)
                a(f'v_pk_add_f32 {r}, {r}, {rr("v", PT+4*j+2*h, 2)}')
            d0, d1 = UU + 2 * j, UU + 2 * j + 1
            a(f'v_and_b32 v{U4}, 0xffff0000, v{d1}'); a(f'v_lshlrev_b32 v{U4+1}, 16, v{d1}')
            a(f'v_and_b32 v{U4+2}, 0xffff0000, v{d0}'); a(f'v_lshlrev_b32 v{U4+3}, 16, v{d0}')
            for h in range(2):
                r = rr('v', Y + 4 * j + 2 * h, 2)
                a(f'v_pk_fma_f32 {r}, {rr("v", U4+2*h, 2)}, {rr("v", DD, 2)}, {r}')
            a(f'v_cvt_pk_bf16_f32 v{OP+2*j}, v{Y+4*j}, v{Y+4*j+1}'); a(f'v_cvt_pk_bf16_f32 v{OP+2*j+1}, v{Y+4*j+2}, v{Y+4*j+3}')
            a(f'ds_write_b64 v{t+2}, {rr("v", OP+2*j, 2)} offset:{16*j}', lg='x')
        R.release('Y', 'UU', 'PT', 'DD', 'U4', 'OP', 'vUE')
        YO = R.alloc('v', 'YO', 8)
        a(f'v_lshrrev_b32 v{t}, 2, v0'); a(f'v_mul_u32_u24 v{t}, 80, v{t}'); a(f'v_and_b32 v{t+1}, 3, v0'); a(f'v_lshl_add_u32 v{t}, v{t+1}, 4, v{t}')
        a(f'v_add_u32 v{t}, {L_YS}, v{t}')
        a(f's_lshl_b32 s{T}, s{self.S_X}, 18'); a(f's_lshl_b32 s{T+1}, s{self.S_I}, 13'); a(f's_add_u32 s{T}, s{T}, s{T+1}'); a(f's_add_u32 s{T}, s{T}, {WS_Y2T}')
        a(f's_add_u32 s{T+1}, s{T}, 4096')
        a(f'v_lshlrev_b32 v{t+1}, 4, v0')
        a('s_waitcnt lgkmcnt(0)')
        a('s_barrier')
        a(f'ds_read_b128 {rr("v", YO, 4)}, v{t}', lg='x'); a(f'ds_read_b128 {rr("v", YO+4, 4)}, v{t} offset:5120', lg='x')
        a('s_waitcnt lgkmcnt(0)')
        a(f'buffer_store_dwordx4 {rr("v", YO, 4)}, v{t+1}, {self.D(self.SRD_WS)}, s{T} offen sc1', vm='yst')
        a(f'buffer_store_dwordx4 {rr("v", YO+4, 4)}, v{t+1}, {self.D(self.SRD_WS)}, s{T+1} offen sc1', vm='yst')
        self.stamp('conv_done')
        self.yo_rel = ['YO', 't']

    def g2_setup(self):
        a, R, T = self.a, self.R, self.T
        L = self.vLANE
        a(f's_lshl_b32 s{self.S_MT64}, s{self.S_X}, 2'); a(f's_and_b32 s{T}, s{self.S_I}, 3'); a(f's_add_u32 s{self.S_MT64}, s{self.S_MT64}, s{T}')
        a(f's_lshr_b32 s{self.S_DT}, s{self.S_I}, 2')
        a(f's_mul_i32 s{T}, s{self.S_W}, {14*4096}')
        a(f's_mul_i32 s{self.S_W2O}, s{self.S_DT}, {TILE_B}'); a(f's_add_u32 s{self.S_W2O}, s{self.S_W2O}, s{T}'); a(f's_add_u32 s{self.S_W2O}, s{self.S_W2O}, {WS_W2F}')
        a(f's_mul_i32 s{self.S_HO}, s{self.S_MT64}, {TILE_B}'); a(f's_add_u32 s{self.S_HO}, s{self.S_HO}, s{T}'); a(f's_add_u32 s{self.S_HO}, s{self.S_HO}, {WS_HF}')
        self.vL16 = R.alloc('v', 'vL16', 1)
        a(f'v_lshlrev_b32 v{self.vL16}, 4, v{L}')
        self.W2A = R.alloc('a', 'W2A', 224)

    def h_setup(self):
        a, R, T = self.a, self.R, self.T
        self.vH16 = R.alloc('v', 'vH16', 4, align=1); self.vH8 = R.alloc('v', 'vH8', 4, align=1)
        for u in range(4):
            a(f's_add_u32 s{T}, s{self.S_W}, {u}'); a(f's_and_b32 s{T}, s{T}, 3'); a(f's_lshl_b32 s{T}, s{T}, 10')
            a(f'v_add_u32 v{self.vH16+u}, s{T}, v{self.vL16}')
            a(f'v_lshrrev_b32 v{self.vH8+u}, 1, v{self.vL16}'); a(f'v_add_u32 v{self.vH8+u}, s{T}, v{self.vH8+u}')

    def w2_fill(self):
        a = self.a
        L = []
        for sg in range(14):
            for dl in range(4):
                def f(sg=sg, dl=dl):
                    d = self.W2A + (sg * 4 + dl) * 4
                    a(f'buffer_load_dwordx4 {rr("a", d, 4)}, v{self.vL16}, {self.D(self.SRD_WS)}, s{self.S_W2O} offen offset:{dl*1024} {self.o("w2f_sc", "sc1")}', vm=f'w2f{sg}')
                    if dl == 3: a(f's_add_u32 s{self.S_W2O}, s{self.S_W2O}, 4096')
                L.append(f)
        return L

    def h_load(self, sg):
        a = self.a
        b = sg % self.NBH
        for u in range(4):
            d = self.HB + b * 16 + u * 4
            if sg % 7 == 6:
                a(f'buffer_load_dwordx2 {rr("v", d, 2)}, v{self.vH8+u}, {self.D(self.SRD_WS)}, s{self.S_HO} offen {self.o("h_sc", "sc1")}', vm=f'h{sg}')
                a(f'buffer_load_dwordx2 {rr("v", d+2, 2)}, v{self.vH8+u}, {self.D(self.SRD_WS)}, s{self.S_HO} offen offset:512 {self.o("h_sc", "sc1")}', vm=f'h{sg}')
            else:
                a(f'buffer_load_dwordx4 {rr("v", d, 4)}, v{self.vH16+u}, {self.D(self.SRD_WS)}, s{self.S_HO} offen {self.o("h_sc", "sc1")}', vm=f'h{sg}')
        a(f's_add_u32 s{self.S_HO}, s{self.S_HO}, 4096')

    def g2(self):
        a, R, T = self.a, self.R, self.T
        L = self.vLANE
        ACC = R.alloc('v', 'ACC2', 64)
        def acc(dl, u): return ACC + (dl * 4 + u) * 4
        XR = R.alloc('v', 'XR', 8); ST = R.alloc('v', 'ST', 2); vO = R.alloc('v', 'vO', 1); t = R.alloc('v', 't2', 8)
        self.stamp('g2_start')
        for sg in range(14):
            if sg == self.o('ysig_sg', 3):
                a.wait_vm('yst'); a('s_barrier'); self.signal('Y', self.S_X); R.release(*self.yo_rel)
            if sg == self.o('pollY_sg', 10):
                self.poll_issue('Y', [('Y', self.S_DT)])
            if sg == 11:
                a(f'v_and_b32 v{t}, 15, v{L}'); a(f'v_lshrrev_b32 v{t+1}, 4, v{L}')
                a(f's_lshl_b32 s{T}, s{self.S_MT64}, 6'); a(f's_lshl_b32 s{T+1}, s{self.S_W}, 4'); a(f's_add_u32 s{T}, s{T}, s{T+1}')
                a(f'v_add_u32 v{t}, s{T}, v{t}')
                a(f'v_lshlrev_b32 v{vO}, 10, v{t}'); a(f'v_lshl_add_u32 v{vO}, v{t+1}, 5, v{vO}')
                a(f's_lshl_b32 s{T}, s{self.S_DT}, 7'); a(f'v_add_u32 v{vO}, s{T}, v{vO}')
                a(f'buffer_load_dwordx4 {rr("v", XR, 4)}, v{vO}, {self.D(self.SRD_Q)}, 0 offen {self.o("x_nt", "none")}', vm='xr')
                a(f'buffer_load_dwordx4 {rr("v", XR+4, 4)}, v{vO}, {self.D(self.SRD_Q)}, 0 offen offset:16 {self.o("x_nt", "none")}', vm='xr')
                a(f'v_lshlrev_b32 v{t}, 3, v{t}'); a(f's_mov_b32 s{T}, {WS_STAT}')
                a(f'buffer_load_dwordx2 {rr("v", ST, 2)}, v{t}, {self.D(self.SRD_WS)}, s{T} offen sc1', vm='xr')
            a.wait_vm(f'h{sg}', f'w2f{sg}')
            b = sg % self.NBH
            for dl in range(4):
                for u in range(4):
                    d = rr('v', acc(dl, u), 4)
                    a(f'v_mfma_f32_16x16x32_bf16 {d}, {rr("a", self.W2A+(sg*4+dl)*4, 4)}, {rr("v", self.HB+b*16+u*4, 4)}, {"0" if sg == 0 else d}')
            if sg + self.NBH < 14: self.h_load(sg + self.NBH)
            if self.o('stamp_g2', 0): self.stamp(f'g2s{sg}')
        R.release('W2A', 'HB', 'vH16', 'vH8')
        self.stamp('g2_main_done')
        self.poll_check('Y', 32)
        a('s_nop 7')
        a('s_barrier')
        self.stamp('pollY')
        YR = R.alloc('v', 'YR', 8)
        a(f'v_lshrrev_b32 v{t}, 3, v0'); a(f'v_and_b32 v{t+1}, 7, v0')
        a(f'v_lshlrev_b32 v{t+2}, 12, v{t}'); a(f'v_lshl_add_u32 v{t+2}, v{t+1}, 4, v{t+2}')
        a(f's_lshl_b32 s{T}, s{self.S_DT}, 18'); a(f's_lshl_b32 s{T+1}, s{self.S_MT64}, 7'); a(f's_add_u32 s{T}, s{T}, s{T+1}'); a(f's_add_u32 s{T}, s{T}, {WS_Y2T}')
        a(f's_add_u32 s{T+1}, s{T}, {32*4096}')
        a(f'buffer_load_dwordx4 {rr("v", YR, 4)}, v{t+2}, {self.D(self.SRD_WS)}, s{T} offen sc1', vm='yr')
        a(f'buffer_load_dwordx4 {rr("v", YR+4, 4)}, v{t+2}, {self.D(self.SRD_WS)}, s{T+1} offen sc1', vm='yr')
        a(f'v_mul_u32_u24 v{t+2}, 144, v{t}'); a(f'v_lshl_add_u32 v{t+2}, v{t+1}, 4, v{t+2}'); a(f'v_add_u32 v{t+2}, {L_YT}, v{t+2}')
        for u in range(1, 4):
            a(f's_add_u32 s{T}, s{self.S_W}, {u}'); a(f's_and_b32 s{T}, s{T}, 3'); a(f's_mul_i32 s{T}, s{T}, {3*4096}'); a(f's_add_u32 s{T}, s{T}, {L_RED2 + (u-1)*4096}')
            a(f'v_add_u32 v{t+3}, s{T}, v{self.vL16}')
            for dl in range(4): a(f'ds_write_b128 v{t+3}, {rr("v", acc(dl, u), 4)} offset:{dl*1024}', lg='x')
        a.wait_vm('yr')
        a(f'ds_write_b128 v{t+2}, {rr("v", YR, 4)}', lg='x'); a(f'ds_write_b128 v{t+2}, {rr("v", YR+4, 4)} offset:{32*144}', lg='x')
        XU = R.alloc('v', 'XU', 16); YU = R.alloc('v', 'YU', 16); NM = R.alloc('v', 'NM', 4); OD = R.alloc('v', 'OD', 8)
        a.wait_vm('xr')
        for r in range(4):
            for dl in range(4):
                sx = XR + 2 * r + (dl >> 1)
                if dl & 1: a(f'v_and_b32 v{XU+4*dl+r}, 0xffff0000, v{sx}')
                else: a(f'v_lshlrev_b32 v{XU+4*dl+r}, 16, v{sx}')
        a(f'v_sub_f32 v{NM}, 0, v{ST}'); a(f'v_sub_f32 v{NM+1}, 0, v{ST}'); a(f'v_mov_b32 v{NM+2}, v{ST+1}'); a(f'v_mov_b32 v{NM+3}, v{ST+1}')
        XN = R.alloc('v', 'XN', 16)
        for dl in range(4):
            for h in range(2):
                xn = rr('v', XN+4*dl+2*h, 2)
                a(f'v_pk_add_f32 {xn}, {rr("v", XU+4*dl+2*h, 2)}, {rr("v", NM, 2)}'); a(f'v_pk_mul_f32 {xn}, {xn}, {rr("v", NM+2, 2)}')
        a(f's_mul_i32 s{T}, s{self.S_W}, {3*4096}'); a(f's_add_u32 s{T}, s{T}, {L_RED2}')
        a(f'v_add_u32 v{t}, s{T}, v{self.vL16}')
        a(f'v_lshrrev_b32 v{t+1}, 4, v{L}'); a(f'v_lshlrev_b32 v{t+1}, 4, v{t+1}'); a(f'v_bfe_u32 v{t+2}, v{L}, 2, 2'); a(f'v_add_u32 v{t+1}, v{t+1}, v{t+2}')
        a(f'v_mul_u32_u24 v{t+1}, 144, v{t+1}'); a(f'v_and_b32 v{t+2}, 3, v{L}'); a(f'v_lshl_add_u32 v{t+1}, v{t+2}, 3, v{t+1}')
        a(f's_lshl_b32 s{T}, s{self.S_W}, 5'); a(f's_add_u32 s{T}, s{T}, {L_YT}'); a(f'v_add_u32 v{t+1}, s{T}, v{t+1}')
        a('s_waitcnt lgkmcnt(0)')
        a('s_barrier')
        self.stamp('g2_red_written')
        R.release('YR')
        PR = R.alloc('v', 'PR', 48); YV = R.alloc('v', 'YV', 8)
        for r in range(4): a(f'ds_read_b64_tr_b16 {rr("v", YV+2*r, 2)}, v{t+1} offset:{r*4*144}', lg='yv')
        for u in range(3):
            for dl in range(4): a(f'ds_read_b128 {rr("v", PR+16*u+4*dl, 4)}, v{t} offset:{u*4096+dl*1024}', lg=f'pr{u}')
        a.wait_lg('yv')
        for r in range(4):
            for dl in range(4):
                sy = YV + 2 * r + (dl >> 1)
                if dl & 1: a(f'v_and_b32 v{YU+4*dl+r}, 0xffff0000, v{sy}')
                else: a(f'v_lshlrev_b32 v{YU+4*dl+r}, 16, v{sy}')
        for dl in range(4):
            for h in range(2):
                x2, y2, xn = rr('v', XU+4*dl+2*h, 2), rr('v', YU+4*dl+2*h, 2), rr('v', XN+4*dl+2*h, 2)
                a(f'v_pk_fma_f32 {x2}, {xn}, {y2}, {x2}')
        for u in range(3):
            a.wait_lg(f'pr{u}')
            for dl in range(4):
                for h in range(2):
                    x2 = rr('v', XU+4*dl+2*h, 2)
                    src = rr('v', PR+16*u+4*dl+2*h, 2)
                    if u == 0:
                        b2 = rr('v', acc(dl, 0) + 2 * h, 2)
                        a(f'v_pk_add_f32 {b2}, {b2}, {src}')
                    else:
                        b2 = rr('v', acc(dl, 0) + 2 * h, 2)
                        a(f'v_pk_add_f32 {b2}, {b2}, {src}')
        for dl in range(4):
            for h in range(2):
                b2 = rr('v', acc(dl, 0) + 2 * h, 2)
                a(f'v_pk_add_f32 {b2}, {b2}, {rr("v", XU+4*dl+2*h, 2)}')
        for r in range(4):
            for h in range(2):
                a(f'v_cvt_pk_bf16_f32 v{OD+2*r+h}, v{acc(2*h, 0)+r}, v{acc(2*h+1, 0)+r}')
        a(f'buffer_store_dwordx4 {rr("v", OD, 4)}, v{vO}, {self.D(self.SRD_OUT)}, 0 offen', vm='out')
        a(f'buffer_store_dwordx4 {rr("v", OD+4, 4)}, v{vO}, {self.D(self.SRD_OUT)}, 0 offen offset:16', vm='out')
        self.stamp('end')

    def finish(self):
        a = self.a
        if self.stamps:
            T = self.T
            a(f's_lshl_b32 s{T}, s2, 2'); a(f's_add_u32 s{T}, s{T}, s{self.S_W}'); a(f's_lshl_b32 s{T}, s{T}, 8'); a(f's_add_u32 s{T}, s{T}, 0xF00000')
            a(f's_mov_b32 s{self.SRD_WS+2}, 0x1000000')
            t = self.R.alloc('v', 'fin', 1)
            a(f'v_lshlrev_b32 v{t}, 2, v{self.vLANE}')
            a(f'buffer_store_dword v{self.vSTAMP}, v{t}, {self.D(self.SRD_WS)}, s{T} offen')
        a.label('L_end')
        a('s_endpgm')

    def build(self):
        a = self.a
        self.prologue()
        self.kv_loads()
        self.g1_setup()
        n_pre = self.o('n_pre', 1); n_a = self.o('n_a', 0); n_f = self.o('n_f', 0); n_b = self.o('n_b', 0); n_c = self.o('n_c', 1)
        if self.o('w2_early', 1): self.w2_task_loads()
        for kp in range(n_pre):
            for f in self.slot_fill(kp): f()
        if not self.o('w2_early', 1): self.w2_task_loads()
        self.hk_setup()
        self.g2_setup()
        a('s_waitcnt lgkmcnt(0)')
        self.stamp('issued0')
        self.burst_a = []; self.fq = []; self.burst_b = []; self.burst_c = []
        k = n_pre
        for lst, n in ((self.burst_a, n_a), (self.fq, n_f), (self.burst_b, n_b), (self.burst_c, n_c)):
            for kp in range(k, k + n): lst += self.slot_fill(kp)
            k += n
        self.pre_slots = k
        self.f_every = self.o('p0_every', 14); self.f_cnt = 0
        self.p0_compute()
        self.f_every = 0
        self.g1_main()
        self.g1_epilogue()
        self.h_setup()
        self.conv()
        self.g2()
        self.finish()
        a.finalize()
        body = a.text()
        ninstr = sum(1 for l in body.splitlines() if l.startswith('    '))
        est = ninstr * 8
        lsh = 2
        while 128 * (64 << lsh) < est: lsh += 1
        body = body.replace('PF_SHIFT', str(lsh + 6)).replace('PF_LSH', str(lsh))
        hdr = open('cdna_kernels/' + KNAME[:-7] + '.s.ref').read().split('; Override launch geometry')[0]
        out = hdr
        out += '; Written with my own generator script (gen/kgen2.py): one fused launch, 256 workgroups.\n'
        out += f'; @launch grid=(256,1,1) block=(256,1,1) lds={LDS_BYTES}\n'
        out += '.amdgcn_target "amdgcn-amd-amdhsa--gfx950"\n.text\n'
        out += f'.globl {KNAME}\n.p2align 8\n.type {KNAME},@function\n{KNAME}:\n'
        out += body
        out += f'''.section .rodata,"a"
.p2align 6
.amdhsa_kernel {KNAME}
  .amdhsa_next_free_vgpr 512
  .amdhsa_next_free_sgpr 102
  .amdhsa_accum_offset 256
  .amdhsa_group_segment_fixed_size 0
  .amdhsa_kernarg_size 96
  .amdhsa_user_sgpr_count 2
  .amdhsa_user_sgpr_kernarg_segment_ptr 1
  .amdhsa_system_sgpr_workgroup_id_x 1
  .amdhsa_float_denorm_mode_32 3
.end_amdhsa_kernel
'''
        return out

if __name__ == '__main__':
    out = sys.argv[1]
    stamps = 'stamps' in sys.argv[2:]
    opt = dict(x.split('=') for x in sys.argv[2:] if '=' in x)
    k = K(stamps, opt)
    s = k.build()
    open(out, 'w').write(s)
    print('instrs', sum(1 for l in s.splitlines() if l.startswith('    ')), 'nops', k.a.nops_inserted, 'hi', k.R.hi)
    if stamps:
        open(out + '.stamps', 'w').write(','.join(k.stamp_names))
```
